```python
import torch

def _softmax(x, axis=-1):
    return torch.softmax(x, dim=axis)
def _gelu(x):
    return torch.nn.functional.gelu(x, approximate="tanh")
def _silu(x):
    return torch.nn.functional.silu(x)
def _sigmoid(x):
    return torch.sigmoid(x)
def _layernorm(x, axis=-1, eps=1e-5):
    m = x.mean(dim=axis, keepdim=True)
    v = x.var(dim=axis, keepdim=True, unbiased=False)
    return (x - m) / torch.sqrt(v + eps)
def _scatter_add(tgt, idx, src, axis=0):
    return tgt.clone().index_add_(axis, idx, src)
def _segment_sum(src, seg, n):
    out = torch.zeros((n,) + src.shape[1:], dtype=src.dtype)
    return out.index_add_(0, seg, src)
def _pad(x, pw):
    flat = tuple(v for pair in reversed(pw) for v in pair)
    return torch.nn.functional.pad(x, flat)

kernel_name = 'parallel_sum__spectral_fnet__moe_arch_mod__prompt'

def setup_inputs():

    _w = (lambda a: (lambda t: t.to(torch.bfloat16) if t.is_floating_point() else t)(torch.as_tensor(a)))
    def _A_setup():
        B, S, D = 1, 2048, 512
        ns = torch.arange(S)[:, None] * torch.arange(S)[None, :]
        nd = torch.arange(D)[:, None] * torch.arange(D)[None, :]
        Ws_re = torch.cos(-2.0 * torch.pi * ns / S).to(float)
        Ws_im = torch.sin(-2.0 * torch.pi * ns / S).to(float)
        Wd_re = torch.cos(-2.0 * torch.pi * nd / D).to(float)
        Wd_im = torch.sin(-2.0 * torch.pi * nd / D).to(float)
        return {
            "x": _w((lambda *s: torch.randn(*s, dtype=torch.bfloat16) * 0.1)(B, S, D)),
            "dft_seq_re": _w(Ws_re),
            "dft_seq_im": _w(Ws_im),
            "dft_hid_re": _w(Wd_re),
            "dft_hid_im": _w(Wd_im),
        }
    _A_in = _A_setup()

    def _B_setup():
        B, S, D, F, C = 1, 2048, 512, 1792, 8
        return {
            "x": _w((lambda *s: torch.randn(*s, dtype=torch.bfloat16) * 0.1)(B, S, D)),
            "w_r": _w((lambda *s: torch.randn(*s, dtype=torch.bfloat16) * 0.4)(D)),
            "w_gate": _w((lambda *s: torch.randn(*s, dtype=torch.bfloat16) * 0.4)(D, F)),
            "w_up": _w((lambda *s: torch.randn(*s, dtype=torch.bfloat16) * 0.4)(D, F)),
            "w_down": _w((lambda *s: torch.randn(*s, dtype=torch.bfloat16) * 0.4)(F, D)),
        }
    _B_in = _B_setup()

    return {
        "A_x": _A_in["x"],
        "A_dft_seq_re": _A_in["dft_seq_re"],
        "A_dft_seq_im": _A_in["dft_seq_im"],
        "A_dft_hid_re": _A_in["dft_hid_re"],
        "A_dft_hid_im": _A_in["dft_hid_im"],
        "B_x": _B_in["x"],
        "B_w_r": _B_in["w_r"],
        "B_w_gate": _B_in["w_gate"],
        "B_w_up": _B_in["w_up"],
        "B_w_down": _B_in["w_down"],
    }

def reference(A_x, A_dft_seq_re, A_dft_seq_im, A_dft_hid_re, A_dft_hid_im, B_x, B_w_r, B_w_gate, B_w_up, B_w_down):
    def _A_ref(x, dft_seq_re, dft_seq_im, dft_hid_re, dft_hid_im):
        a = torch.einsum("bsd,ed->bse", x, dft_hid_re)
        b = torch.einsum("bsd,ed->bse", x, dft_hid_im)
        y = torch.einsum("ts,bse->bte", dft_seq_re, a) - torch.einsum("ts,bse->bte", dft_seq_im, b)
        return y

    def _B_ref(x, w_r, w_gate, w_up, w_down):
        B, S, D = x.shape
        C = 8
        r = x @ w_r
        idx = torch.argsort(-r, axis=-1)[:, :C]
        idx_e = (lambda x, n, axis: torch.repeat_interleave(x, n, dim=axis))(idx.reshape(B, C, 1), D, axis=2)
        x_sel = (lambda x, i, axis: torch.take_along_dim(x, i, dim=axis))(x, idx_e, axis=1)
        g = _silu(x_sel @ w_gate)
        u = x_sel @ w_up
        y = (g * u) @ w_down
        r_sel = _sigmoid((lambda x, i, axis: torch.take_along_dim(x, i, dim=axis))(r, idx, axis=1))
        y = y * r_sel.reshape(B, C, 1)
        b_off = (torch.arange(B) * S).reshape(B, 1)
        flat_idx = (idx + b_off).reshape(B * C)
        zero = (x * 0.0).reshape(B * S, D)
        upd = _scatter_add(zero, flat_idx, y.reshape(B * C, D), axis=0)
        return x + upd.reshape(B, S, D)

    x = A_x
    xn = _layernorm(x, axis=-1)
    return x + _A_ref(xn, A_dft_seq_re, A_dft_seq_im, A_dft_hid_re, A_dft_hid_im) + _B_ref(xn, B_w_r, B_w_gate, B_w_up, B_w_down)
```

```python
import sys, struct
sys.path.insert(0, 'tools')
import hazard
from asmlib import *

def f2u(x): return struct.unpack('<I', struct.pack('<f', x))[0]
def fl(x): return hex(f2u(x))

class B:
    def __init__(self, vstart=1, sstart=3):
        self.L = []; self.nv = vstart; self.ns = sstart; self.maxv = vstart
    def e(self, t):
        for l in t.strip('\n').split('\n'):
            l = l.strip()
            if not l: continue
            self.L.append(l if l.endswith(':') else '    ' + l)
    def v(self, n=1, al=None):
        al = al or (1 if n == 1 else 2)
        self.nv = (self.nv + al - 1) // al * al
        r = self.nv; self.nv += n; self.maxv = max(self.maxv, self.nv)
        return r
    def s(self, n=1, al=None):
        al = al or (1 if n == 1 else (2 if n == 2 else 4))
        self.ns = (self.ns + al - 1) // al * al
        r = self.ns; self.ns += n
        assert self.ns <= 100
        return r
    def text(self, verbose=False):
        t, n = hazard.fix(self.L, verbose)
        return '\n'.join(t) + '\n'

def vr(a, n): return f'v[{a}:{a+n-1}]'
def sr(a, n): return f's[{a}:{a+n-1}]'

def srd(b, dst, lo, size):
    b.e(f's_mov_b32 s{dst}, s{lo}\ns_mov_b32 s{dst+1}, s{lo+1}\ns_mov_b32 s{dst+2}, {hex(size)}\ns_mov_b32 s{dst+3}, 0x20000')

def wave_red(b, op, v, sdst):
    for ctl in ('row_ror:8', 'row_ror:4', 'row_ror:2', 'row_ror:1'):
        b.e(f'{op}_dpp v{v}, v{v}, v{v} {ctl} row_mask:0xf bank_mask:0xf')
    b.e(f'{op}_dpp v{v}, v{v}, v{v} row_bcast:15 row_mask:0xa bank_mask:0xf')
    b.e(f'{op}_dpp v{v}, v{v}, v{v} row_bcast:31 row_mask:0xc bank_mask:0xf')
    if sdst is not None:
        b.e(f'v_readlane_b32 s{sdst}, v{v}, 63')

WS_A = 0x0; A_T1 = 0x42000
WS_U = 0x300000
WS_XN = 0x500000
WS_KEY = 0x700000
WS_WIN = 0x704000
WS_PART = 0x800000
WS_SIZE = 0x1000000
NMOE = 112
```

```python
from common import *

RS = 544
ZOFF = 8192
K1_LDS = ZOFF + 16 * RS

def gen_k1(label='k1_kernel'):
    b = B()
    e = b.e
    sX = b.s(2); sWRp = b.s(2); sWSp = b.s(2)
    srdX = b.s(4); srdWR = b.s(4); srdWS = b.s(4)
    sW = b.s(); sS2 = b.s(); sRow = b.s(); sT = b.s(); sT2 = b.s(); sT3 = b.s()
    sOnes = b.s(); sLo = b.s(); sHi = b.s(); sRed = b.s()
    sUb0 = b.s(); sUb1 = b.s(); sAo = [b.s() for _ in range(6)]
    e(f's_cmp_ge_u32 s2, 256\ns_cbranch_scc1 L_{label}_end')
    e(f's_load_dwordx2 {sr(sX,2)}, s[0:1], 0\ns_load_dwordx2 {sr(sWRp,2)}, s[0:1], 48\ns_load_dwordx2 {sr(sWSp,2)}, s[0:1], 96')
    vL = b.v(); vN = b.v(); vQ = b.v(); vA = b.v(); vT = b.v(); vT2 = b.v(); vT3 = b.v()
    X = b.v(4, 4); WR = b.v(4, 4)
    e(f'v_lshrrev_b32 v{vT}, 6, v0\nv_and_b32 v{vL}, 63, v0')
    e(f'v_readfirstlane_b32 s{sW}, v{vT}')
    e(f's_and_b32 s{sS2}, s2, 7\ns_lshl_b32 s{sS2}, s{sS2}, 5\ns_lshr_b32 s{sT}, s2, 3\ns_add_u32 s{sS2}, s{sS2}, s{sT}')
    e(f'v_lshlrev_b32 v{vA}, 4, v{vL}')
    e(f's_lshl_b32 s{sRow}, s{sW}, 8\ns_add_u32 s{sRow}, s{sRow}, s{sS2}\ns_lshl_b32 s{sT}, s{sRow}, 10')
    e('s_waitcnt lgkmcnt(0)')
    srd(b, srdX, sX, 0x200000)
    e(f'buffer_load_dwordx4 {vr(X,4)}, v{vA}, {sr(srdX,4)}, s{sT} offen')
    srd(b, srdWR, sWRp, 1024)
    e(f'buffer_load_dwordx4 {vr(WR,4)}, v{vA}, {sr(srdWR,4)}, 0 offen')
    srd(b, srdWS, sWSp, WS_SIZE)
    e(f'v_and_b32 v{vN}, 15, v{vL}\nv_lshrrev_b32 v{vQ}, 4, v{vL}')
    vNf = b.v(); vQ4 = b.v()
    e(f'v_cvt_f32_u32 v{vNf}, v{vN}\nv_lshlrev_b32 v{vT}, 2, v{vQ}\nv_cvt_f32_u32 v{vQ4}, v{vT}')
    ang = b.v(8); co = b.v(8, 2); si = b.v(8, 2)
    Mre = [b.v(4, 4), b.v(4, 4)]; Mim = [b.v(4, 4), b.v(4, 4)]
    e(f'v_mul_f32 v{vT}, {fl(1/32)}, v{vNf}\nv_mul_f32 v{ang}, v{vT}, v{vQ4}')
    for j, c in enumerate((0, 1, 2, 3, 16, 17, 18, 19)):
        if j: e(f'v_fmamk_f32 v{ang+j}, v{vT}, {fl(float(c))}, v{ang}')
    for j in range(8):
        e(f'v_cos_f32 v{co+j}, v{ang+j}\nv_sin_f32_e64 v{si+j}, -v{ang+j}')
    for i in range(4):
        e(f'v_cvt_pk_bf16_f32 v{Mre[0]+i}, v{co+2*i}, v{co+2*i+1}')
        e(f'v_cvt_pk_bf16_f32 v{Mim[0]+i}, v{si+2*i}, v{si+2*i+1}')
    for i in range(4):
        e(f'v_xor_b32 v{Mre[1]+i}, 0x80000000, v{Mre[0]+i}\nv_xor_b32 v{Mim[1]+i}, 0x80000000, v{Mim[0]+i}')
    TC = b.v(8, 2); TS = b.v(8, 2)
    for h in range(2):
        if h == 0: e(f'v_mul_f32 v{vT}, {fl(1/512)}, v{vNf}')
        else: e(f'v_add_f32 v{vT}, {fl(16/512)}, v{vT}')
        e(f'v_mul_f32 v{ang+4*h}, v{vT}, v{vQ4}')
        for r in range(1, 4): e(f'v_fmamk_f32 v{ang+4*h+r}, v{vT}, {fl(float(r))}, v{ang+4*h}')
    for j in range(8):
        e(f'v_cos_f32 v{TC+j}, v{ang+j}\nv_sin_f32 v{TS+j}, v{ang+j}')
    MB = b.v(4, 4); MNy = b.v(4, 4); MC = b.v(2, 2)
    vE2 = b.v(); vPp = b.v()
    e(f'v_and_b32 v{vE2}, 7, v{vN}\nv_lshrrev_b32 v{vPp}, 3, v{vN}')
    e(f'v_cvt_f32_u32 v{vT}, v{vE2}\nv_cvt_f32_u32 v{vT2}, v{vPp}')
    e(f'v_mul_f32 v{vT}, {fl(1/16)}, v{vT}\nv_mul_f32 v{vT2}, {fl(0.25)}, v{vT2}')
    e(f'v_fma_f32 v{ang}, v{vT}, v{vQ4}, v{vT2}')
    for r in range(1, 4): e(f'v_fmamk_f32 v{ang+r}, v{vT}, {fl(float(r))}, v{ang}')
    for r in range(4): e(f'v_cos_f32 v{co+r}, v{ang+r}\nv_sin_f32 v{si+r}, v{ang+r}')
    e(f'v_cvt_pk_f16_f32 v{MB}, v{co}, v{co+1}\nv_cvt_pk_f16_f32 v{MB+1}, v{co+2}, v{co+3}')
    e(f'v_cvt_pk_f16_f32 v{MB+2}, v{si}, v{si+1}\nv_cvt_pk_f16_f32 v{MB+3}, v{si+2}, v{si+3}')
    e(f'v_cmp_gt_u32 vcc, 8, v{vN}\nv_mov_b32 v{vT}, 0xbc003c00\nv_mov_b32 v{MNy+2}, 0\nv_mov_b32 v{MNy+3}, 0')
    e(f'v_cndmask_b32 v{MNy}, 0, v{vT}, vcc\nv_cndmask_b32 v{MNy+1}, 0, v{vT}, vcc')
    e(f'v_lshrrev_b32 v{vT}, 1, v{vN}\nv_and_b32 v{vT2}, 1, v{vN}\nv_lshlrev_b32 v{vT3}, 9, v{vQ}')
    e(f'v_add_u32 v{vT3}, s{sS2}, v{vT3}')
    e(f'v_cvt_f32_u32 v{vT}, v{vT}\nv_cvt_f32_u32 v{vT2}, v{vT2}\nv_cvt_f32_u32 v{vT3}, v{vT3}')
    e(f'v_mul_f32 v{vT3}, {fl(1/2048)}, v{vT3}\nv_mul_f32 v{vT2}, {fl(0.25)}, v{vT2}')
    e(f'v_fma_f32 v{ang}, v{vT}, v{vT3}, v{vT2}')
    e(f'v_fmamk_f32 v{ang+1}, v{vT}, {fl(0.125)}, v{ang}')
    for r in range(2): e(f'v_cos_f32 v{co+r}, v{ang+r}\nv_sin_f32 v{si+r}, v{ang+r}')
    e(f'v_cvt_pk_f16_f32 v{MC}, v{co}, v{si}\nv_cvt_pk_f16_f32 v{MC+1}, v{co+1}, v{si+1}')
    vLw = b.v(); vLr = b.v(); vZw = b.v(); vZr = b.v(); vUa = b.v(); vAa = b.v()
    e(f's_lshl_b32 s{sT}, s{sW}, 10')
    e(f'v_add_u32 v{vLw}, s{sT}, v{vA}')
    e(f'v_lshl_add_u32 v{vLr}, v{vL}, 3, s{sT}')
    e(f'v_lshrrev_b32 v{vT}, 1, v{vE2}\nv_xor_b32 v{vT}, v{vT}, v{vQ}\nv_lshlrev_b32 v{vT}, 3, v{vT}')
    e(f'v_lshl_add_u32 v{vT}, v{vE2}, 6, v{vT}')
    e(f'v_mul_u32_u24 v{vT2}, {RS}, v{vPp}\ns_mul_i32 s{sT}, s{sW}, {2*RS}\ns_add_u32 s{sT}, s{sT}, {ZOFF}')
    e(f'v_add3_u32 v{vZw}, v{vT}, v{vT2}, s{sT}')
    e(f'v_lshrrev_b32 v{vT}, 2, v{vL}\nv_mul_u32_u24 v{vT}, {RS}, v{vT}')
    e(f's_lshr_b32 s{sT}, s{sW}, 1\nv_and_b32 v{vT2}, 3, v{vL}\nv_xor_b32 v{vT2}, s{sT}, v{vT2}')
    e(f'v_lshl_add_u32 v{vT}, v{vT2}, 3, v{vT}')
    e(f's_lshl_b32 s{sT}, s{sW}, 6\ns_add_u32 s{sT}, s{sT}, {ZOFF}\nv_add_u32 v{vZr}, s{sT}, v{vT}')
    e(f's_and_b32 s{sT}, s{sRow}, 7\ns_lshl_b32 s{sT}, s{sT}, 18\ns_lshr_b32 s{sT2}, s{sRow}, 3\ns_lshl_b32 s{sT2}, s{sT2}, 4')
    e(f's_add_u32 s{sUb0}, s{sT}, s{sT2}\ns_add_u32 s{sUb0}, s{sUb0}, {hex(WS_U)}')
    e(f's_sub_u32 s{sT3}, 2048, s{sRow}\ns_and_b32 s{sT3}, s{sT3}, 2047')
    e(f's_and_b32 s{sT}, s{sT3}, 7\ns_lshl_b32 s{sT}, s{sT}, 18\ns_lshr_b32 s{sT2}, s{sT3}, 3\ns_lshl_b32 s{sT2}, s{sT2}, 4')
    e(f's_add_u32 s{sUb1}, s{sT}, s{sT2}\ns_add_u32 s{sUb1}, s{sUb1}, {hex(WS_U + 4096 + 63*8192)}')
    e(f'v_lshlrev_b32 v{vT}, 13, v{vL}\nv_add_u32 v{vT2}, s{sUb0}, v{vT}\nv_sub_u32 v{vT}, s{sUb1}, v{vT}')
    e(f'v_cmp_gt_u32 vcc, 32, v{vL}\nv_cndmask_b32 v{vUa}, v{vT}, v{vT2}, vcc')
    e(f's_mov_b32 s{sT}, {hex(2*A_T1)}\nv_mul_lo_u32 v{vT}, s{sT}, v{vQ}')
    e(f'v_lshl_add_u32 v{vT}, v{vPp}, 13, v{vT}\nv_lshl_add_u32 v{vAa}, v{vE2}, 2, v{vT}')
    e(f's_lshl_b32 s{sT}, s{sS2}, 5\ns_lshl_b32 s{sT2}, s{sW}, 15\ns_add_u32 s{sAo[0]}, s{sT}, s{sT2}')
    e(f's_add_u32 s{sAo[1]}, s{sAo[0]}, {hex(A_T1)}\ns_add_u32 s{sAo[2]}, s{sAo[0]}, 16384\ns_add_u32 s{sAo[3]}, s{sAo[1]}, 16384')
    e(f's_add_u32 s{sAo[4]}, s{sT}, 0x40000\ns_add_u32 s{sAo[5]}, s{sAo[4]}, {hex(A_T1)}')
    e(f's_mov_b32 s{sOnes}, 0x3f803f80\ns_mov_b32 s{sLo}, 0x00003f80\ns_mov_b32 s{sHi}, 0x3f800000')
    D = b.v(8, 2); XNr = b.v(4, 4); U = b.v(4, 4); vS = b.v(); vMb = b.v(); vDm = b.v(); vRc = b.v(2, 2); vAcc = b.v(2, 2); vMb2 = b.v(2, 2)
    e('s_waitcnt vmcnt(1)')
    e(f'v_dot2_f32_bf16 v{vS}, v{X}, s{sOnes}, 0')
    for i in range(1, 4): e(f'v_dot2_f32_bf16 v{vS}, v{X+i}, s{sOnes}, v{vS}')
    wave_red(b, 'v_add_f32', vS, sRed)
    e(f'v_mul_f32 v{vT}, s{sRed}, v{vT}') if False else None
    e(f'v_mov_b32 v{vT}, {fl(-1/512)}\nv_mul_f32 v{vT}, s{sRed}, v{vT}')
    e(f'v_cvt_pk_bf16_f32 v{vMb}, v{vT}, v{vT}\nv_and_b32 v{vMb}, 0xffff0000, v{vMb}')
    e(f'v_sub_f32 v{vDm}, v{vMb}, v{vT}')
    for i in range(4):
        e(f'v_dot2_f32_bf16 v{D+2*i}, v{X+i}, s{sLo}, v{vMb}\nv_dot2_f32_bf16 v{D+2*i+1}, v{X+i}, s{sHi}, v{vMb}')
    e(f'v_pk_mul_f32 {vr(vAcc,2)}, {vr(D,2)}, {vr(D,2)}')
    for i in range(1, 4): e(f'v_pk_fma_f32 {vr(vAcc,2)}, {vr(D+2*i,2)}, {vr(D+2*i,2)}, {vr(vAcc,2)}')
    e(f'v_add_f32 v{vS}, v{vAcc}, v{vAcc+1}')
    wave_red(b, 'v_add_f32', vS, sRed)
    e(f'v_mul_f32 v{vDm}, v{vDm}, v{vDm}\nv_mov_b32 v{vT}, {fl(1/512)}')
    e(f'v_fma_f32 v{vT}, s{sRed}, v{vT}, -v{vDm}')
    e(f'v_max_f32 v{vT}, 0, v{vT}')
    e(f'v_cvt_pk_bf16_f32 v{vT}, v{vT}, v{vT}\nv_and_b32 v{vT}, 0xffff0000, v{vT}')
    e(f'v_add_f32 v{vT}, {fl(1e-5)}, v{vT}')
    e(f'v_cvt_pk_bf16_f32 v{vT}, v{vT}, v{vT}\nv_and_b32 v{vT}, 0xffff0000, v{vT}')
    e(f'v_sqrt_f32 v{vT}, v{vT}')
    e(f'v_cvt_pk_bf16_f32 v{vT}, v{vT}, v{vT}\nv_and_b32 v{vT}, 0xffff0000, v{vT}')
    e(f'v_rcp_f32 v{vRc}, v{vT}')
    DB = b.v(8, 2)
    for i in range(4): e(f'v_cvt_pk_bf16_f32 v{XNr+i}, v{D+2*i}, v{D+2*i+1}')
    for i in range(4): e(f'v_lshlrev_b32 v{DB+2*i}, 16, v{XNr+i}\nv_and_b32 v{DB+2*i+1}, 0xffff0000, v{XNr+i}')
    for i in range(4): e(f'v_pk_mul_f32 {vr(DB+2*i,2)}, {vr(DB+2*i,2)}, {vr(vRc,2)} op_sel_hi:[1,0]')
    for i in range(4): e(f'v_cvt_pk_bf16_f32 v{XNr+i}, v{DB+2*i}, v{DB+2*i+1}')
    e(f'ds_write_b128 v{vLw}, {vr(XNr,4)}')
    e(f's_lshl_b32 s{sT}, s{sRow}, 10\ns_add_u32 s{sT}, s{sT}, {hex(WS_XN)}')
    e(f'buffer_store_dwordx4 {vr(XNr,4)}, v{vA}, {sr(srdWS,4)}, s{sT} offen')
    AO = b.v(4, 4)
    e(f's_waitcnt lgkmcnt(0)\nds_read_b64_tr_b16 {vr(AO,2)}, v{vLr}\nds_read_b64_tr_b16 {vr(AO+2,2)}, v{vLr} offset:512')
    for i in range(4): e(f'v_pk_add_f32 {vr(D+2*i,2)}, {vr(D+2*i,2)}, {vr(DB+2*i,2)}')
    e(f'v_mov_b32 v{vMb2}, v{vMb}')
    for i in range(4): e(f'v_pk_add_f32 {vr(D+2*i,2)}, {vr(D+2*i,2)}, {vr(vMb2,2)} op_sel_hi:[1,0] neg_lo:[0,1] neg_hi:[0,1]')
    for i in range(4): e(f'v_cvt_pk_bf16_f32 v{U+i}, v{D+2*i}, v{D+2*i+1}')
    e(f'buffer_store_dwordx4 {vr(U,4)}, v{vUa}, {sr(srdWS,4)}, 0 offen')
    Dre = [b.v(4, 4), b.v(4, 4)]; Dim = [b.v(4, 4), b.v(4, 4)]
    e('s_waitcnt lgkmcnt(0)')
    for h in range(2):
        e(f'v_mfma_f32_16x16x32_bf16 {vr(Dre[h],4)}, {vr(AO,4)}, {vr(Mre[h],4)}, 0')
        e(f'v_mfma_f32_16x16x32_bf16 {vr(Dim[h],4)}, {vr(AO,4)}, {vr(Mim[h],4)}, 0')
    e('s_waitcnt vmcnt(2)')
    e(f'v_dot2_f32_bf16 v{vS}, v{XNr}, v{WR}, 0')
    for i in range(1, 4): e(f'v_dot2_f32_bf16 v{vS}, v{XNr+i}, v{WR+i}, v{vS}')
    OB = [b.v(4, 4), b.v(4, 4)]; TR = b.v(4, 2); TI = b.v(4, 2)
    DBb = [b.v(4, 4), b.v(4, 4)]; DNy = b.v(4, 4)
    for h in range(2):
        for p in range(2):
            a = Dre[h] + 2*p; bb = Dim[h] + 2*p; c = TC + 4*h + 2*p; s = TS + 4*h + 2*p
            e(f'v_pk_mul_f32 {vr(TR+2*p,2)}, {vr(a,2)}, {vr(c,2)}\nv_pk_mul_f32 {vr(TI+2*p,2)}, {vr(bb,2)}, {vr(c,2)}')
            e(f'v_pk_fma_f32 {vr(TR+2*p,2)}, {vr(bb,2)}, {vr(s,2)}, {vr(TR+2*p,2)}')
            e(f'v_pk_fma_f32 {vr(TI+2*p,2)}, {vr(a,2)}, {vr(s,2)}, {vr(TI+2*p,2)} neg_lo:[1,0,0] neg_hi:[1,0,0]')
        e(f'v_cvt_pk_f16_f32 v{OB[h]}, v{TR}, v{TR+1}\nv_cvt_pk_f16_f32 v{OB[h]+1}, v{TR+2}, v{TR+3}')
        e(f'v_cvt_pk_f16_f32 v{OB[h]+2}, v{TI}, v{TI+1}\nv_cvt_pk_f16_f32 v{OB[h]+3}, v{TI+2}, v{TI+3}')
        e(f'v_mfma_f32_16x16x32_f16 {vr(DBb[h],4)}, {vr(OB[h],4)}, {vr(MB,4)}, 0')
        if h == 0: e(f'v_mfma_f32_16x16x32_f16 {vr(DNy,4)}, {vr(OB[h],4)}, {vr(MNy,4)}, 0')
    wave_red(b, 'v_add_f32', vS, None)
    e(f'v_cvt_pk_bf16_f32 v{vS}, v{vS}, v{vS}\nv_readlane_b32 s{sRed}, v{vS}, 63')
    e(f's_ashr_i32 s{sT}, s{sRed}, 31\ns_or_b32 s{sT}, s{sT}, 0x80000000\ns_xor_b32 s{sRed}, s{sRed}, s{sT}\ns_and_b32 s{sRed}, s{sRed}, 0xffff0000')
    e(f's_sub_u32 s{sT}, 2047, s{sRow}\ns_or_b32 s{sRed}, s{sRed}, s{sT}')
    ZO = b.v(4, 2)
    for h in range(2):
        e(f'v_cvt_pk_f16_f32 v{ZO+2*h}, v{DBb[h]}, v{DBb[h]+1}\nv_cvt_pk_f16_f32 v{ZO+2*h+1}, v{DBb[h]+2}, v{DBb[h]+3}')
        e(f'ds_write_b64 v{vZw}, {vr(ZO+2*h,2)} offset:{32*h}')
    e(f'v_cvt_f16_f32 v{vT}, v{DNy}\nv_mov_b32 v{vT2}, s{sRed}')
    e(f's_lshl_b32 s{sT}, s2, 5\ns_lshl_b32 s{sT2}, s{sW}, 2\ns_add_u32 s{sT}, s{sT}, s{sT2}\ns_add_u32 s{sT}, s{sT}, {hex(WS_KEY)}')
    e(f's_mov_b64 exec, 0x101\nds_write_b16 v{vZw}, v{vT} offset:512')
    e(f's_mov_b64 exec, 1\nbuffer_store_dword v{vT2}, v{vA}, {sr(srdWS,4)}, s{sT} offen\ns_mov_b64 exec, -1')
    e('s_waitcnt lgkmcnt(0)\ns_barrier')
    BC = [b.v(2, 2), b.v(2, 2), b.v(2, 2)]; DC = [b.v(4, 4), b.v(4, 4), b.v(4, 4)]; O = b.v(6)
    e(f'ds_read_b64_tr_b16 {vr(BC[0],2)}, v{vZr}\nds_read_b64_tr_b16 {vr(BC[1],2)}, v{vZr} offset:32')
    e(f'ds_read_b64_tr_b16 {vr(BC[2],2)}, v{vZr} offset:512')
    e('s_waitcnt lgkmcnt(2)')
    e(f'v_mfma_f32_16x16x16_f16 {vr(DC[0],4)}, {vr(MC,2)}, {vr(BC[0],2)}, 0\ns_waitcnt lgkmcnt(1)')
    e(f'v_mfma_f32_16x16x16_f16 {vr(DC[1],4)}, {vr(MC,2)}, {vr(BC[1],2)}, 0\ns_waitcnt lgkmcnt(0)')
    e(f'v_mfma_f32_16x16x16_f16 {vr(DC[2],4)}, {vr(MC,2)}, {vr(BC[2],2)}, 0')
    for T in range(2):
        for p in range(2):
            e(f'v_cvt_pk_f16_f32 v{O+2*T+p}, v{DC[T]+2*p}, v{DC[T]+2*p+1}')
            e(f'buffer_store_dword v{O+2*T+p}, v{vAa}, {sr(srdWS,4)}, s{sAo[2*T+p]} offen')
    e(f's_cmp_lg_u32 s{sW}, 0\ns_cbranch_scc1 L_{label}_end')
    e(f'v_cvt_pk_f16_f32 v{O+4}, v{DC[2]}, v{DC[2]+1}\nv_cvt_pk_f16_f32 v{O+5}, v{DC[2]+2}, v{DC[2]+3}')
    e(f's_mov_b32 exec_lo, 0x00010001\ns_mov_b32 exec_hi, 0x00010001')
    e(f'buffer_store_dword v{O+4}, v{vAa}, {sr(srdWS,4)}, s{sAo[4]} offen\nbuffer_store_dword v{O+5}, v{vAa}, {sr(srdWS,4)}, s{sAo[5]} offen')
    e(f'L_{label}_end:\ns_endpgm')
    return b
```

```python
from common import *

K2_LDS = 56 * 1024

def fft2_body(b, label):
    e = b.e
    sO = b.s(2); sWSp = b.s(2); srdO = b.s(4); srdWS = b.s(4)
    sW = b.s(); sT1 = b.s(); sG = b.s(); sT = b.s(); sT2 = b.s(); sLo = b.s(); sHi = b.s()
    e(f's_load_dwordx2 {sr(sO,2)}, s[0:1], 80\ns_load_dwordx2 {sr(sWSp,2)}, s[0:1], 96')
    vL = b.v(); vN = b.v(); vQ = b.v(); vT = b.v(); vT2 = b.v(); vT3 = b.v(); vPa = b.v(); vUa = b.v()
    P = b.v(8, 4); U = b.v(4, 4)
    e(f'v_lshrrev_b32 v{vT}, 6, v0\nv_and_b32 v{vL}, 63, v0')
    e(f'v_readfirstlane_b32 s{sW}, v{vT}')
    e(f's_and_b32 s{sT1}, s2, 7\ns_lshr_b32 s{sG}, s2, 3')
    e(f'v_and_b32 v{vN}, 15, v{vL}\nv_lshrrev_b32 v{vQ}, 4, v{vL}')
    e(f'v_lshlrev_b32 v{vPa}, 11, v{vQ}\nv_lshl_add_u32 v{vPa}, v{vN}, 5, v{vPa}\nv_lshlrev_b32 v{vUa}, 4, v0')
    e(f's_mul_i32 s{sT}, s{sT1}, {hex(A_T1)}\ns_lshl_b32 s{sT2}, s{sG}, 13\ns_add_u32 s{sT}, s{sT}, s{sT2}')
    sPo = b.s(); sUo = b.s()
    e(f's_lshl_b32 s{sPo}, s{sW}, 3\ns_cmp_eq_u32 s{sW}, 4\ns_cselect_b32 s{sPo}, 8192, s{sPo}\ns_add_u32 s{sPo}, s{sPo}, s{sT}')
    e(f's_lshl_b32 s{sUo}, s{sT1}, 18\ns_add_u32 s{sUo}, s{sUo}, s{sT2}\ns_add_u32 s{sUo}, s{sUo}, {hex(WS_U)}')
    e('s_waitcnt lgkmcnt(0)')
    srd(b, srdWS, sWSp, WS_SIZE)
    e(f's_cmp_gt_u32 s{sW}, 4\ns_cbranch_scc1 L_{label}_noP')
    for i in range(4): e(f'buffer_load_dwordx2 {vr(P+2*i,2)}, v{vPa}, {sr(srdWS,4)}, s{sPo} offen offset:{512*i}')
    e(f'L_{label}_noP:')
    e(f'buffer_load_dwordx4 {vr(U,4)}, v{vUa}, {sr(srdWS,4)}, s{sUo} offen')
    srd(b, srdO, sO, 0x200000)
    vOa = b.v(); vYr = b.v(); vYw = b.v()
    e(f'v_and_b32 v{vT}, 255, v0\nv_lshl_add_u32 v{vT2}, v{vT}, 3, s{sT1}')
    e(f'v_sub_u32 v{vT3}, 0x800, v{vT2}\nv_and_b32 v{vT3}, 0x7ff, v{vT3}')
    e(f's_lshl_b32 s{sT}, s{sG}, 4\ns_sub_u32 s{sT2}, 1008, s{sT}\ns_cmp_lt_u32 s{sW}, 4\ns_cselect_b32 s{sT}, s{sT}, s{sT2}')
    e(f's_cselect_b64 vcc, -1, 0')
    e(f'v_cndmask_b32 v{vT2}, v{vT3}, v{vT2}, vcc\nv_lshl_add_u32 v{vOa}, v{vT2}, 10, s{sT}')
    e(f'v_bfe_u32 v{vT2}, v{vT}, 5, 2\nv_lshlrev_b32 v{vT2}, 4, v{vT2}\nv_lshlrev_b32 v{vT}, 2, v{vT}\nv_xor_b32 v{vYr}, v{vT}, v{vT2}')
    e(f's_mov_b32 s{sLo}, 0x00003f80\ns_mov_b32 s{sHi}, 0x3f800000')
    e(f's_cmp_gt_u32 s{sW}, 4\ns_cbranch_scc1 L_{label}_bar')
    e(f'v_bfe_u32 v{vT}, v{vN}, 1, 2\nv_xor_b32 v{vT}, v{vT}, v{vQ}\nv_lshlrev_b32 v{vT}, 4, v{vT}\nv_lshl_add_u32 v{vT}, v{vN}, 6, v{vT}')
    e(f's_lshl_b32 s{sT}, s{sW}, 11\nv_add_u32 v{vYw}, s{sT}, v{vT}')
    vNf = b.v(); vQ4 = b.v(); ang = b.v(4); co = b.v(4, 2); si = b.v(4, 2)
    Br = b.v(4, 4); Bi = b.v(4, 4); B2 = b.v(4, 4); TC = b.v(4, 2); TS = b.v(4, 2)
    e(f'v_cvt_f32_u32 v{vNf}, v{vN}\nv_lshlrev_b32 v{vT}, 2, v{vQ}\nv_cvt_f32_u32 v{vQ4}, v{vT}')
    e(f'v_mul_f32 v{vT}, {fl(1/16)}, v{vNf}\nv_mul_f32 v{ang}, v{vT}, v{vQ4}')
    for r in range(1, 4): e(f'v_fmamk_f32 v{ang+r}, v{vT}, {fl(float(r))}, v{ang}')
    for r in range(4): e(f'v_cos_f32 v{co+r}, v{ang+r}\nv_sin_f32 v{si+r}, v{ang+r}')
    pi = (0, 2, 1, 3)
    for i in range(4):
        e(f'v_cvt_pk_f16_f32 v{Br+i}, v{co+pi[i]}, v{si+pi[i]}\nv_cvt_pk_f16_f32 v{Bi+i}, -v{si+pi[i]}, v{co+pi[i]}')
    for r in range(4): e(f'v_mul_f32 v{co+r}, 4.0, v{co+r}\nv_mul_f32 v{si+r}, 4.0, v{si+r}\nv_mul_f32 v{ang+r}, {fl(1/16)}, v{ang+r}')
    e(f'v_cvt_pk_f16_f32 v{B2}, v{co}, v{co+1}\nv_cvt_pk_f16_f32 v{B2+1}, v{co+2}, v{co+3}')
    e(f'v_cvt_pk_f16_f32 v{B2+2}, v{si}, v{si+1}\nv_cvt_pk_f16_f32 v{B2+3}, v{si+2}, v{si+3}')
    for r in range(4): e(f'v_cos_f32 v{TC+r}, v{ang+r}\nv_sin_f32 v{TS+r}, v{ang+r}')
    for r in range(4): e(f'v_mul_f32 v{TC+r}, {fl(0.25)}, v{TC+r}\nv_mul_f32 v{TS+r}, {fl(0.25)}, v{TS+r}')
    Dr = [b.v(4, 4), b.v(4, 4)]; Di = [b.v(4, 4), b.v(4, 4)]; OB = [b.v(4, 4), b.v(4, 4)]; TR = b.v(4, 2); TI = b.v(4, 2); D2 = [b.v(4, 4), b.v(4, 4)]
    e(f's_waitcnt vmcnt(1)\nv_swap_b32 v{P+1}, v{P+4}\nv_swap_b32 v{P+3}, v{P+6}')
    for c in range(2):
        e(f'v_mfma_f32_16x16x32_f16 {vr(Dr[c],4)}, {vr(P+4*c,4)}, {vr(Br,4)}, 0')
        e(f'v_mfma_f32_16x16x32_f16 {vr(Di[c],4)}, {vr(P+4*c,4)}, {vr(Bi,4)}, 0')
    for c in range(2):
        for p in range(2):
            a = Dr[c] + 2*p; bb = Di[c] + 2*p; cc = TC + 2*p; s = TS + 2*p
            e(f'v_pk_mul_f32 {vr(TR+2*p,2)}, {vr(a,2)}, {vr(cc,2)}\nv_pk_mul_f32 {vr(TI+2*p,2)}, {vr(bb,2)}, {vr(cc,2)}')
            e(f'v_pk_fma_f32 {vr(TR+2*p,2)}, {vr(bb,2)}, {vr(s,2)}, {vr(TR+2*p,2)}')
            e(f'v_pk_fma_f32 {vr(TI+2*p,2)}, {vr(a,2)}, {vr(s,2)}, {vr(TI+2*p,2)} neg_lo:[1,0,0] neg_hi:[1,0,0]')
        e(f'v_cvt_pk_f16_f32 v{OB[c]}, v{TR}, v{TR+1}\nv_cvt_pk_f16_f32 v{OB[c]+1}, v{TR+2}, v{TR+3}')
        e(f'v_cvt_pk_f16_f32 v{OB[c]+2}, v{TI}, v{TI+1}\nv_cvt_pk_f16_f32 v{OB[c]+3}, v{TI+2}, v{TI+3}')
        e(f'v_mfma_f32_16x16x32_f16 {vr(D2[c],4)}, {vr(OB[c],4)}, {vr(B2,4)}, 0')
    for c in range(2): e(f'ds_write_b128 v{vYw}, {vr(D2[c],4)} offset:{1024*c}')
    e(f's_waitcnt lgkmcnt(0)\ns_nop 7\nL_{label}_bar:\ns_barrier')
    Y = b.v(8); O = b.v(4, 4)
    e(f's_cmp_lt_u32 s{sW}, 4\ns_cbranch_scc0 L_{label}_mir')
    for j in range(8): e(f'ds_read_b32 v{Y+j}, v{vYr} offset:{1024*j}')
    e(f's_branch L_{label}_fin\nL_{label}_mir:')
    for j in range(8): e(f'ds_read_b32 v{Y+j}, v{vYr} offset:{1024*(8-j)}')
    e(f'L_{label}_fin:\ns_waitcnt vmcnt(0) lgkmcnt(0)')
    for i in range(4):
        e(f'v_dot2_f32_bf16 v{Y+2*i}, v{U+i}, s{sLo}, v{Y+2*i}\nv_dot2_f32_bf16 v{Y+2*i+1}, v{U+i}, s{sHi}, v{Y+2*i+1}')
    for i in range(4): e(f'v_cvt_pk_bf16_f32 v{O+i}, v{Y+2*i}, v{Y+2*i+1}')
    e(f'buffer_store_dwordx4 {vr(O,4)}, v{vOa}, {sr(srdO,4)}, 0 offen')
    e('s_endpgm')

def bf16r(b, v, n=1):
    e = b.e
    if n == 1:
        e(f'v_cvt_pk_bf16_f32 v{v}, v{v}, v{v}\nv_and_b32 v{v}, 0xffff0000, v{v}')
    else:
        for i in range(0, n, 2):
            e(f'v_cvt_pk_bf16_f32 v{v+i+1}, v{v+i}, v{v+i+1}')
        for i in range(0, n, 2):
            e(f'v_lshlrev_b32 v{v+i}, 16, v{v+i+1}\nv_and_b32 v{v+i+1}, 0xffff0000, v{v+i+1}')

def moe_body(b, label):
    e = b.e
    sGp = b.s(4, 4); sDp = b.s(2); sWSp = b.s(2); srdW = b.s(4); srdD = b.s(4); srdWS = b.s(4)
    sW = b.s(); sJ = b.s(); sT = b.s(); sT2 = b.s(); sKq = b.s(); sWh = b.s(); sWin = b.s(); sM = b.s(2)
    e(f's_load_dwordx4 {sr(sGp,4)}, s[0:1], 56\ns_load_dwordx2 {sr(sDp,2)}, s[0:1], 72\ns_load_dwordx2 {sr(sWSp,2)}, s[0:1], 96')
    vL = b.v(); vN = b.v(); vQ = b.v(); vT = b.v(); vT2 = b.v(); vT3 = b.v(); vKa = b.v(); vWa = b.v(); vDa = b.v()
    K = b.v(4, 4)
    e(f'v_lshrrev_b32 v{vT}, 6, v0\nv_and_b32 v{vL}, 63, v0')
    e(f'v_readfirstlane_b32 s{sW}, v{vT}')
    e(f's_sub_u32 s{sJ}, s2, 256')
    e(f'v_and_b32 v{vN}, 15, v{vL}\nv_lshrrev_b32 v{vQ}, 4, v{vL}\nv_lshlrev_b32 v{vKa}, 4, v0')
    e(f's_and_b32 s{sKq}, s{sW}, 3\ns_lshr_b32 s{sWh}, s{sW}, 2')
    e(f'v_bfe_u32 v{vT}, v{vL}, 3, 2\nv_lshlrev_b32 v{vT}, 3, v{vT}\nv_bfe_u32 v{vT2}, v{vL}, 5, 1\nv_lshl_add_u32 v{vT}, v{vT2}, 2, v{vT}')
    e(f'v_bfe_u32 v{vT2}, v{vL}, 1, 2\nv_add_u32 v{vT}, v{vT}, v{vT2}\nv_mul_u32_u24 v{vT}, 3584, v{vT}')
    e(f'v_and_b32 v{vT2}, 1, v{vL}\nv_lshl_add_u32 v{vWa}, v{vT2}, 4, v{vT}')
    e(f'v_lshrrev_b32 v{vT}, 3, v{vL}\nv_lshlrev_b32 v{vT}, 10, v{vT}\nv_and_b32 v{vT2}, 7, v{vL}\nv_lshl_add_u32 v{vDa}, v{vT2}, 4, v{vT}')
    e('s_waitcnt lgkmcnt(0)')
    srd(b, srdWS, sWSp, WS_SIZE)
    e(f's_mov_b32 s{sT}, {hex(WS_KEY)}\nbuffer_load_dwordx4 {vr(K,4)}, v{vKa}, {sr(srdWS,4)}, s{sT} offen')
    e(f's_cmp_eq_u32 s{sWh}, 0\ns_cselect_b32 s{srdW}, s{sGp}, s{sGp+2}\ns_cselect_b32 s{srdW+1}, s{sGp+1}, s{sGp+3}')
    e(f's_mov_b32 s{srdW+2}, {512*3584}\ns_mov_b32 s{srdW+3}, 0x20000')
    srd(b, srdD, sDp, 1792 * 1024)
    e(f's_mul_i32 s{sT}, s{sKq}, {128*3584}\ns_lshl_b32 s{sT2}, s{sJ}, 5\ns_add_u32 s{sT}, s{sT}, s{sT2}')
    e(f's_lshl_b32 s{sT2}, s{sW}, 12\ns_mov_b32 m0, s{sT2}')
    for i in range(4):
        e(f'buffer_load_dwordx4 v{vWa}, {sr(srdW,4)}, s{sT} offen offset:{1024*i} lds')
        if i < 3: e(f's_add_u32 s{sT}, s{sT}, {32*3584 - 1024}')
    e(f's_lshl_b32 s{sT}, s{sJ}, 14\ns_lshl_b32 s{sT2}, s{sW}, 7\ns_add_u32 s{sT}, s{sT}, s{sT2}')
    e(f's_lshl_b32 s{sT2}, s{sW}, 11\ns_add_u32 s{sT2}, s{sT2}, 32768\ns_mov_b32 m0, s{sT2}')
    e(f'buffer_load_dwordx4 v{vDa}, {sr(srdD,4)}, s{sT} offen lds\ns_add_u32 s{sT}, s{sT}, {8192-1024}')
    e(f'buffer_load_dwordx4 v{vDa}, {sr(srdD,4)}, s{sT} offen offset:1024 lds')
    vM = b.v(); vWv = b.v(); Kd = b.v(4)
    e(f's_mov_b32 s{sWin}, 0\nv_mov_b32 v{vWv}, 0\ns_waitcnt vmcnt(6)')
    for rnd in range(8):
        for i in range(4): e(f'v_subrev_u32 v{Kd+i}, s{sWin}, v{K+i}')
        e(f'v_max3_u32 v{vM}, v{Kd}, v{Kd+1}, v{Kd+2}\nv_max_u32 v{vM}, v{vM}, v{Kd+3}')
        wave_red(b, 'v_max_u32', vM, sT)
        e(f's_add_u32 s{sWin}, s{sWin}, s{sT}')
        e(f'v_writelane_b32 v{vWv}, s{sWin}, {rnd}')
    e(f's_lshl_b32 s{sT}, s{sW}, 5\ns_add_u32 s{sT}, s{sT}, {48*1024}')
    e(f'v_lshlrev_b32 v{vT2}, 2, v{vL}\nv_add_u32 v{vT}, s{sT}, v{vT2}\nv_add_u32 v{vT2}, {48*1024}, v{vT2}')
    e(f's_mov_b64 exec, 0xff\nds_write_b32 v{vT}, v{vWv}\ns_mov_b64 exec, -1\ns_waitcnt lgkmcnt(0)\ns_barrier')
    e(f'ds_read_b32 v{K}, v{vT2}\ns_mov_b32 s{sWin}, 0\ns_mov_b32 s{sM}, 0x01010101\ns_mov_b32 s{sM+1}, 0x01010101\ns_waitcnt lgkmcnt(0)')
    for rnd in range(8):
        e(f'v_subrev_u32 v{vM}, s{sWin}, v{K}')
        wave_red(b, 'v_max_u32', vM, sT)
        e(f's_add_u32 s{sWin}, s{sWin}, s{sT}')
        e(f's_mov_b64 exec, {sr(sM,2)}\nv_mov_b32 v{vWv}, s{sWin}\ns_mov_b64 exec, -1\ns_lshl_b64 {sr(sM,2)}, {sr(sM,2)}, 1')
    XB = b.v(16, 4); vXa = b.v()
    e(f'v_and_b32 v{vT}, 0x7ff, v{vWv}\nv_sub_u32 v{vT}, 0x7ff, v{vT}\nv_lshlrev_b32 v{vT}, 10, v{vT}\nv_lshl_add_u32 v{vXa}, v{vQ}, 4, v{vT}')
    e(f's_lshl_b32 s{sT}, s{sKq}, 8\ns_add_u32 s{sT}, s{sT}, {hex(WS_XN)}')
    for i in range(4): e(f'buffer_load_dwordx4 {vr(XB+4*i,4)}, v{vXa}, {sr(srdWS,4)}, s{sT} offen offset:{64*i}')
    e(f's_or_b32 s{sT}, s{sJ}, s{sW}\ns_cmp_lg_u32 s{sT}, 0\ns_cbranch_scc1 L_{label}_nowin')
    e(f'v_lshlrev_b32 v{vT}, 2, v{vL}\ns_mov_b32 s{sT}, {hex(WS_WIN)}\ns_mov_b64 exec, 0xff')
    e(f'buffer_store_dword v{vWv}, v{vT}, {sr(srdWS,4)}, s{sT} offen\ns_mov_b64 exec, -1\ns_waitcnt vmcnt(0)')
    e(f'L_{label}_nowin:')
    WA = b.v(16, 4); WD = b.v(8, 2); vR = b.v()
    e(f's_waitcnt vmcnt(4)\ns_lshl_b32 s{sT}, s{sW}, 12\nv_lshl_add_u32 v{vR}, v{vL}, 3, s{sT}')
    for i in range(4):
        e(f'ds_read_b64_tr_b16 {vr(WA+4*i,2)}, v{vR} offset:{1024*i}\nds_read_b64_tr_b16 {vr(WA+4*i+2,2)}, v{vR} offset:{1024*i+512}')
    e(f's_lshl_b32 s{sT}, s{sW}, 11\ns_add_u32 s{sT}, s{sT}, 32768\nv_lshrrev_b32 v{vT}, 2, v{vL}\nv_lshlrev_b32 v{vT}, 7, v{vT}')
    e(f'v_and_b32 v{vT2}, 3, v{vL}\nv_lshl_add_u32 v{vT}, v{vT2}, 3, v{vT}\nv_add_u32 v{vT}, s{sT}, v{vT}')
    for T in range(4): e(f'ds_read_b64_tr_b16 {vr(WD+2*T,2)}, v{vT} offset:{32*T}')
    G = b.v(4, 4); vPw = b.v(); vPr = b.v()
    PB = 49 * 1024 - 768
    PB = 48 * 1024 + 256
    e(f's_lshl_b32 s{sT}, s{sW}, 10\ns_add_u32 s{sT}, s{sT}, {PB}\nv_lshl_add_u32 v{vPw}, v{vL}, 4, s{sT}')
    e(f'v_lshrrev_b32 v{vT}, 3, v{vN}\nv_lshlrev_b32 v{vT}, 12, v{vT}\nv_and_b32 v{vT2}, 0x37, v{vL}\nv_lshl_add_u32 v{vT}, v{vT2}, 4, v{vT}\nv_add_u32 v{vPr}, {PB}, v{vT}')
    e('s_waitcnt lgkmcnt(0)')
    for i in range(4):
        e(f's_waitcnt vmcnt({3-i})')
        e(f'v_mfma_f32_16x16x32_bf16 {vr(G,4)}, {vr(WA+4*i,4)}, {vr(XB+4*i,4)}, {"0" if i == 0 else vr(G,4)}')
    e(f'ds_write_b128 v{vPw}, {vr(G,4)}\ns_waitcnt lgkmcnt(0)\ns_barrier')
    PR = b.v(16, 4)
    for i in range(4): e(f'ds_read_b128 {vr(PR+4*i,4)}, v{vPr} offset:{1024*i}')
    e('s_waitcnt lgkmcnt(0)')
    for p in range(2):
        e(f'v_pk_add_f32 {vr(PR+2*p,2)}, {vr(PR+2*p,2)}, {vr(PR+4+2*p,2)}\nv_pk_add_f32 {vr(PR+8+2*p,2)}, {vr(PR+8+2*p,2)}, {vr(PR+12+2*p,2)}')
    for p in range(2): e(f'v_pk_add_f32 {vr(PR+2*p,2)}, {vr(PR+2*p,2)}, {vr(PR+8+2*p,2)}')
    bf16r(b, PR, 4)
    Uu = PR + 4; S = PR + 8
    for r in range(4): e(f'v_mov_b32_dpp v{Uu+r}, v{PR+r} row_ror:8 row_mask:0xf bank_mask:0xf')
    for r in range(4): e(f'v_mul_f32 v{S+r}, {fl(-1.4426950408889634)}, v{PR+r}')
    for r in range(4): e(f'v_exp_f32 v{S+r}, v{S+r}')
    for r in range(4): e(f'v_add_f32 v{S+r}, 1.0, v{S+r}')
    for r in range(4): e(f'v_rcp_f32 v{S+r}, v{S+r}')
    for r in range(4): e(f'v_mul_f32 v{S+r}, v{S+r}, v{PR+r}')
    bf16r(b, S, 4)
    for r in range(4): e(f'v_mul_f32 v{S+r}, v{S+r}, v{Uu+r}')
    H = b.v(2, 2)
    e(f'v_cvt_pk_bf16_f32 v{H}, v{S}, v{S+1}\nv_cvt_pk_bf16_f32 v{H+1}, v{S+2}, v{S+3}')
    DD = b.v(16, 4); vOa = b.v()
    for T in range(4): e(f'v_mfma_f32_16x16x16_bf16 {vr(DD+4*T,4)}, {vr(WD+2*T,2)}, {vr(H,2)}, 0')
    e(f'v_lshlrev_b32 v{vT}, 11, v{vN}\nv_lshl_add_u32 v{vOa}, v{vQ}, 4, v{vT}')
    e(f's_lshl_b32 s{sT}, s{sJ}, 14\ns_lshl_b32 s{sT2}, s{sW}, 8\ns_add_u32 s{sT}, s{sT}, s{sT2}\ns_add_u32 s{sT}, s{sT}, {hex(WS_PART)}')
    e('s_mov_b32 exec_lo, 0x00ff00ff\ns_mov_b32 exec_hi, 0x00ff00ff')
    for T in range(4): e(f'buffer_store_dwordx4 {vr(DD+4*T,4)}, v{vOa}, {sr(srdWS,4)}, s{sT} offen offset:{64*T}')
    e('s_endpgm')

def gen_k2(label='k2_kernel'):
    b = B()
    b.e(f's_cmp_ge_u32 s2, 256\ns_cbranch_scc1 L_{label}_moe')
    fft2_body(b, label)
    b.nv = 1; b.ns = 3
    b.e(f'L_{label}_moe:\ns_cmp_ge_u32 s2, {256+NMOE}\ns_cbranch_scc1 L_{label}_end')
    moe_body(b, label)
    b.e(f'L_{label}_end:\ns_endpgm')
    return b

def gen_k3(label='k3_kernel'):
    b = B(); e = b.e
    sO = b.s(2); sWSp = b.s(2); srdO = b.s(4); srdWS = b.s(4); sTok = b.s(); sCh = b.s(); sT = b.s(); sT2 = b.s(); sKey = b.s(); sKp = b.s(2)
    e(f's_cmp_ge_u32 s2, 256\ns_cbranch_scc1 L_{label}_end')
    e(f's_load_dwordx2 {sr(sO,2)}, s[0:1], 80\ns_load_dwordx2 {sr(sWSp,2)}, s[0:1], 96')
    vT = b.v(); vT2 = b.v(); vA = b.v(); vK = b.v(); P = b.v(28, 4); O = b.v(2, 2); vC = b.v()
    e(f's_lshr_b32 s{sTok}, s2, 5\ns_and_b32 s{sCh}, s2, 31')
    e(f'v_lshrrev_b32 v{vT}, 2, v0\nv_lshlrev_b32 v{vT}, 14, v{vT}\nv_and_b32 v{vC}, 3, v0\nv_lshl_add_u32 v{vA}, v{vC}, 4, v{vT}')
    e(f's_lshl_b32 s{sT}, s{sTok}, 11\ns_lshl_b32 s{sT2}, s{sCh}, 6\ns_add_u32 s{sT}, s{sT}, s{sT2}\ns_add_u32 s{sT}, s{sT}, {hex(WS_PART)}')
    e(f's_lshl_b32 s{sT2}, s{sTok}, 2\ns_add_u32 s{sT2}, s{sT2}, {hex(WS_WIN)}\nv_mov_b32 v{vT}, 0')
    e('s_waitcnt lgkmcnt(0)')
    srd(b, srdWS, sWSp, WS_SIZE)
    e(f'buffer_load_dword v{vK}, v{vT}, {sr(srdWS,4)}, s{sT2} offen')
    for i in range(7):
        e(f'buffer_load_dwordx4 {vr(P+4*i,4)}, v{vA}, {sr(srdWS,4)}, s{sT} offen')
        if i < 6: e(f's_add_u32 s{sT}, s{sT}, {16*16384}')
    srd(b, srdO, sO, 0x200000)
    vOa = b.v(); vRs = b.v()
    e(f's_waitcnt vmcnt(7)\nv_and_b32 v{vT}, 0x7ff, v{vK}\nv_sub_u32 v{vT}, 0x7ff, v{vT}\nv_lshlrev_b32 v{vT}, 10, v{vT}\nv_lshl_add_u32 v{vOa}, v{vC}, 3, v{vT}')
    e(f's_lshl_b32 s{sT2}, s{sCh}, 5\nbuffer_load_dwordx2 {vr(O,2)}, v{vOa}, {sr(srdO,4)}, s{sT2} offen')
    e(f'v_ashrrev_i32 v{vT}, 31, v{vK}\nv_not_b32 v{vT}, v{vT}\nv_or_b32 v{vT}, 0x80000000, v{vT}\nv_xor_b32 v{vT}, v{vT}, v{vK}\nv_and_b32 v{vT}, 0xffff0000, v{vT}')
    e(f'v_mul_f32 v{vT}, {fl(-1.4426950408889634)}, v{vT}\nv_exp_f32 v{vT}, v{vT}\nv_add_f32 v{vT}, 1.0, v{vT}\nv_rcp_f32 v{vRs}, v{vT}')
    bf16r(b, vRs)
    for i in range(1, 7):
        e(f's_waitcnt vmcnt({7-i})')
        for p in range(2): e(f'v_pk_add_f32 {vr(P+2*p,2)}, {vr(P+2*p,2)}, {vr(P+4*i+2*p,2)}')
    for ctl in ('row_ror:4', 'row_ror:8'):
        for r in range(4): e(f'v_add_f32_dpp v{P+r}, v{P+r}, v{P+r} {ctl} row_mask:0xf bank_mask:0xf')
    for sw in ('v_permlane16_swap_b32', 'v_permlane32_swap_b32'):
        for r in range(4): e(f'v_mov_b32 v{P+4+r}, v{P+r}')
        for r in range(4): e(f'{sw} v{P+r}, v{P+4+r}')
        for r in range(4): e(f'v_add_f32 v{P+r}, v{P+r}, v{P+4+r}')
    bf16r(b, P, 4)
    for r in range(4): e(f'v_mul_f32 v{P+r}, v{P+r}, v{vRs}')
    e('s_waitcnt vmcnt(0)')
    e(f'v_lshlrev_b32 v{P+4}, 16, v{O}\nv_and_b32 v{P+5}, 0xffff0000, v{O}\nv_lshlrev_b32 v{P+6}, 16, v{O+1}\nv_and_b32 v{P+7}, 0xffff0000, v{O+1}')
    for r in range(4): e(f'v_add_f32 v{P+r}, v{P+r}, v{P+4+r}')
    e(f'v_cvt_pk_bf16_f32 v{O}, v{P}, v{P+1}\nv_cvt_pk_bf16_f32 v{O+1}, v{P+2}, v{P+3}')
    e(f's_mov_b64 exec, 0xf\nbuffer_store_dwordx2 {vr(O,2)}, v{vOa}, {sr(srdO,4)}, s{sT2} offen')
    e(f'L_{label}_end:\ns_endpgm')
    return b
```

```python
NAME = 'parallel_sum__spectral_fnet__moe_arch_mod__prompt'
def header(launches):
    s = ''
    for (k, g, b, lds) in launches:
        s += f'; @launch kernel={k} grid=({g},1,1) block=({b},1,1) lds={lds}\n'
    s += '.amdgcn_target "amdgcn-amd-amdhsa--gfx950"\n.text\n'
    return s
def kernel(label, body):
    return f'.globl {label}\n.p2align 8\n.type {label},@function\n{label}:\n{body}\n'
def descriptor(label, vgpr, sgpr=102, accum=None):
    accum = accum or ((vgpr + 3) // 4 * 4)
    return (f'.amdhsa_kernel {label}\n  .amdhsa_next_free_vgpr {vgpr}\n  .amdhsa_next_free_sgpr {sgpr}\n'
            f'  .amdhsa_accum_offset {accum}\n  .amdhsa_group_segment_fixed_size 0\n  .amdhsa_kernarg_size 104\n'
            '  .amdhsa_user_sgpr_count 2\n  .amdhsa_user_sgpr_kernarg_segment_ptr 1\n  .amdhsa_system_sgpr_workgroup_id_x 1\n'
            '.end_amdhsa_kernel\n')
def rodata(descs):
    s = '.section .rodata,"a"\n'
    for d in descs:
        s += '.p2align 6\n' + d
    return s
```

```python
import re

TRANS = ('v_exp_f32','v_log_f32','v_rcp_f32','v_rsq_f32','v_sqrt_f32','v_sin_f32','v_cos_f32','v_rcp_iflag_f32',
         'v_exp_f16','v_log_f16','v_rcp_f16','v_rsq_f16','v_sqrt_f16','v_sin_f16','v_cos_f16')

def regs_of(tok):
    tok = tok.strip()
    tok = re.sub(r'^-|^\|', '', tok); tok = tok.rstrip('|')
    m = re.match(r'^abs\((.*)\)$', tok)
    if m: tok = m.group(1)
    m = re.match(r'^neg\((.*)\)$', tok)
    if m: tok = m.group(1)
    m = re.match(r'^([vsa])\[(\d+):(\d+)\]$', tok)
    if m: return [(m.group(1), i) for i in range(int(m.group(2)), int(m.group(3)) + 1)]
    m = re.match(r'^([vsa])(\d+)$', tok)
    if m: return [(m.group(1), int(m.group(2)))]
    if tok in ('vcc', 'vcc_lo', 'vcc_hi'): return [('x', 'vcc')]
    if tok in ('exec', 'exec_lo', 'exec_hi'): return [('x', 'exec')]
    if tok == 'm0': return [('x', 'm0')]
    return []

class I:
    def __init__(self, text):
        self.text = text
        t = text.split(';')[0].strip()
        self.is_label = t.endswith(':')
        self.is_dir = t.startswith('.') or t == ''
        self.op = ''
        self.dst = []; self.src = []; self.srcC = []; self.srcAB = []
        if self.is_label or self.is_dir: return
        parts = t.split(None, 1)
        self.op = op = parts[0]
        rest = parts[1] if len(parts) > 1 else ''
        ops = []; depth = 0; cur = ''
        for ch in rest:
            if ch == '[': depth += 1
            if ch == ']': depth -= 1
            if ch == ',' and depth == 0: ops.append(cur.strip()); cur = ''
            else: cur += ch
        if cur.strip(): ops.append(cur.strip())
        self.mods = ''
        if ops:
            p = ops[-1].split(None, 1)
            ops[-1] = p[0]
            self.mods = p[1] if len(p) > 1 else ''
        self.ops = ops
        base = re.sub(r'_(e32|e64|dpp|sdwa)$', '', op)
        self.base = base
        self.mfma = op.startswith('v_mfma')
        self.valu = op.startswith('v_') and not self.mfma
        self.trans = base in TRANS
        self.dot = base.startswith('v_dot')
        self.dpp = '_dpp' in op or 'row_' in self.mods or 'quad_perm' in self.mods
        self.permlane = base.startswith('v_permlane')
        self.vmem = op.startswith('buffer_') or op.startswith('global_') or op.startswith('flat_')
        self.ds = op.startswith('ds_')
        self.salu = op.startswith('s_')
        self.lds_dma = self.vmem and (' lds' in ' ' + self.mods or 'load_lds' in op)
        R = [regs_of(o) for o in ops]
        flat = lambda L: [r for x in L for r in x]
        if self.mfma:
            self.dst = R[0]; self.srcAB = R[1] + R[2]; self.srcC = R[3]; self.src = self.srcAB + self.srcC
            m = re.search(r'_(\d+)x(\d+)x(\d+)', op)
            self.passes = 8 if m.group(1) == '32' else 4
        elif self.valu:
            if base in ('v_swap_b32',) or self.permlane:
                self.dst = R[0] + R[1]; self.src = R[0] + R[1]
            elif base.startswith('v_cmp'):
                self.dst = R[0]; self.src = flat(R[1:])
                if base.startswith('v_cmpx'): self.dst = self.dst + [('x', 'exec')]
            elif base in ('v_add_co_u32','v_sub_co_u32','v_subrev_co_u32','v_addc_co_u32','v_subb_co_u32','v_div_scale_f32','v_mad_u64_u32'):
                self.dst = R[0] + R[1]; self.src = flat(R[2:])
            else:
                self.dst = R[0]; self.src = flat(R[1:])
                if base in ('v_fmac_f32','v_dot2c_f32_bf16','v_dot2c_f32_f16','v_writelane_b32','v_pk_fmac_f16') or self.dpp or 'UNUSED_PRESERVE' in self.mods:
                    self.src = self.src + R[0]
                if base == 'v_cndmask_b32' and len(ops) == 3: self.src += [('x', 'vcc')]
        elif self.vmem:
            if 'store' in op or ('atomic' in op and 'sc0' not in self.mods):
                self.src = flat(R)
            elif 'atomic' in op:
                self.src = flat(R); self.dst = R[0]
            elif self.lds_dma:
                self.src = flat(R) + [('x', 'm0')]
            elif op in ('buffer_wbl2', 'buffer_inv'):
                pass
            else:
                self.dst = R[0]; self.src = flat(R[1:])
            self.wide_store = 'store' in op and ('x3' in op or 'x4' in op)
            if self.wide_store:
                self.store_data = R[0] if op.startswith('buffer_') else R[1]
        elif self.ds:
            if op.startswith('ds_write') or (not '_rtn' in op and not op.startswith('ds_read') and not 'permute' in op and not 'swizzle' in op):
                self.src = flat(R)
            else:
                self.dst = R[0]; self.src = flat(R[1:])
        elif self.salu:
            if op.startswith('s_cmp') or op.startswith('s_cbranch') or op.startswith('s_bitcmp') or op in ('s_waitcnt','s_nop','s_barrier','s_endpgm','s_branch','s_setprio','s_sleep'):
                self.src = flat(R)
            else:
                self.dst = R[0]; self.src = flat(R[1:])
                if 'saveexec' in op: self.dst = self.dst + [('x', 'exec')]
    def states(self):
        if self.is_label or self.is_dir: return 0
        if self.op == 's_nop': return int(self.ops[0]) + 1
        return 1

def ov(a, b):
    return bool(set(a) & set(b))

def need(p, c):
    n = 0
    vd = [r for r in p.dst if r[0] in 'va']
    sd = [r for r in p.dst if r[0] == 's' or r == ('x', 'vcc')]
    if p.valu:
        if c.mfma and ov(vd, c.src): n = max(n, 3 if p.dot else 2)
        if c.valu:
            if p.trans and ov(vd, c.src): n = max(n, 1)
            if (c.dpp or c.permlane) and ov(vd, c.src): n = max(n, 2)
            if c.base in ('v_readlane_b32', 'v_readfirstlane_b32') and ov(vd, c.src): n = max(n, 1)
            if ov(sd, c.src):
                n = max(n, 2)
                if c.base in ('v_readlane_b32', 'v_writelane_b32'): n = max(n, 4)
                if c.base == 'v_div_fmas_f32': n = max(n, 4)
            if ('x', 'exec') in p.dst: n = max(n, 5)
            if ('dst_sel' in p.mods and 'dst_sel:DWORD' not in p.mods) and ov(vd, c.src + c.dst): n = max(n, 1)
        if p.dot:
            if c.valu and c.base == p.base:
                ab = [r for o in c.ops[1:3] for r in regs_of(o)]
                if ov(vd, ab): n = max(n, 3)
            elif ov(vd, c.src + c.dst): n = max(n, 3)
        if c.vmem and ov(sd, c.src): n = max(n, 5)
        if c.mfma and ('x', 'exec') in p.dst: n = max(n, 4)
    if p.mfma:
        big = {4: 8, 8: 12}[p.passes]
        if c.mfma:
            if ov(p.dst, c.srcAB): n = max(n, big)
            if ov(p.dst, c.srcC) and not (p.dst == c.srcC and p.passes == c.passes):
                n = max(n, {4: 6, 8: 10}[p.passes])
            if ov(p.dst, c.dst) and not ov(p.dst, c.srcC): n = max(n, big)
        elif (c.valu or c.vmem or c.ds) and ov(p.dst, c.src + c.dst): n = max(n, big)
        if c.valu and ov(p.srcC, c.dst): n = max(n, {4: 3, 8: 7}[p.passes])
    if p.vmem and getattr(p, 'wide_store', False) and ov(p.store_data, c.dst):
        n = max(n, 2 if c.valu else 1)
    if p.salu and ('x', 'm0') in p.dst and c.vmem and c.lds_dma: n = max(n, 1)
    return n

def fix(lines, verbose=False):
    out = []
    total = 0
    for t in lines:
        c = I(t)
        if c.is_label or c.is_dir:
            out.append(c); continue
        req = 0; dist = 0
        for p in reversed(out):
            if dist >= 20: break
            if p.is_label or p.is_dir: continue
            k = need(p, c)
            if k > dist: req = max(req, k - dist)
            dist += p.states()
        if req > 0:
            total += req
            r = req
            while r > 0:
                k = min(r, 16)
                out.append(I(f'    s_nop {k-1}')); r -= k
            if verbose: print('nop', req, 'before', t.strip())
        out.append(c)
    return [i.text for i in out], total
```

```python
from common import *
from k1 import *
from k2 import *
def build(out, pre, post):
    k1 = gen_k1(); k2 = gen_k2(); k3 = gen_k3()
    ls = [('k1_kernel', 256, 512, K1_LDS + 1024), ('k2_kernel', 256 + NMOE, 512, 60 * 1024), ('k3_kernel', 256, 64, 0)]
    E = ('e_kernel', 1, 64, 0)
    s = header([E]*pre + ls + [E]*post)
    for (l, _, _, _), k in zip(ls, (k1, k2, k3)): s += kernel(l, k.text())
    s += kernel('e_kernel', 's_endpgm')
    s += rodata([descriptor(l[0], max(k.maxv, 8)) for l, k in zip(ls, (k1, k2, k3))] + [descriptor('e_kernel', 8)])
    open(out, 'w').write(s)
build('c00.s', 0, 0)
build('c01.s', 0, 1)
build('c10.s', 1, 0)
build('c03.s', 0, 3)
```

```python
import sys, struct
sys.path.insert(0, 'tools')
import hazard
from asmlib import *

def f2u(x): return struct.unpack('<I', struct.pack('<f', x))[0]
def fl(x): return hex(f2u(x))

class B:
    def __init__(self, vstart=1, sstart=3):
        self.L = []; self.nv = vstart; self.ns = sstart; self.maxv = vstart
    def e(self, t):
        for l in t.strip('\n').split('\n'):
            l = l.strip()
            if not l: continue
            self.L.append(l if l.endswith(':') else '    ' + l)
    def v(self, n=1, al=None):
        al = al or (1 if n == 1 else 2)
        self.nv = (self.nv + al - 1) // al * al
        r = self.nv; self.nv += n; self.maxv = max(self.maxv, self.nv)
        return r
    def s(self, n=1, al=None):
        al = al or (1 if n == 1 else (2 if n == 2 else 4))
        self.ns = (self.ns + al - 1) // al * al
        r = self.ns; self.ns += n
        assert self.ns <= 80
        return r
    STAMPS = False
    def stamp(self, i):
        if B.STAMPS: self.e(f's_memrealtime s[{80+2*i}:{81+2*i}]\ns_waitcnt lgkmcnt(0)')
    def stamp_init(self):
        if B.STAMPS:
            for i in range(80, 96): self.e(f's_mov_b32 s{i}, 0')
            self.stamp(0)
    def stamp_out(self, srdws, off):
        if not B.STAMPS: return
        self.e('s_waitcnt vmcnt(0)'); self.stamp(7)
        self.e('s_mov_b64 exec, 1\nv_lshrrev_b32 v12, 6, v0\nv_lshlrev_b32 v12, 5, v12\ns_lshl_b32 s96, s2, 9')
        self.e(f's_add_u32 s96, s96, {hex(off)}')
        for i in range(8): self.e(f'v_mov_b32 v{4+i}, s{80+2*i}')
        self.e(f'buffer_store_dwordx4 v[4:7], v12, s[{srdws}:{srdws+3}], s96 offen\nbuffer_store_dwordx4 v[8:11], v12, s[{srdws}:{srdws+3}], s96 offen offset:16')
        self.maxv = max(self.maxv, 13)
    def text(self, verbose=False):
        t, n = hazard.fix(self.L, verbose)
        return '\n'.join(t) + '\n'

def vr(a, n): return f'v[{a}:{a+n-1}]'
def sr(a, n): return f's[{a}:{a+n-1}]'

def srd(b, dst, lo, size):
    b.e(f's_mov_b32 s{dst}, s{lo}\ns_mov_b32 s{dst+1}, s{lo+1}\ns_mov_b32 s{dst+2}, {hex(size)}\ns_mov_b32 s{dst+3}, 0x20000')

def wave_red(b, op, v, sdst):
    for ctl in ('row_ror:8', 'row_ror:4', 'row_ror:2', 'row_ror:1'):
        b.e(f'{op}_dpp v{v}, v{v}, v{v} {ctl} row_mask:0xf bank_mask:0xf')
    b.e(f'{op}_dpp v{v}, v{v}, v{v} row_bcast:15 row_mask:0xa bank_mask:0xf')
    b.e(f'{op}_dpp v{v}, v{v}, v{v} row_bcast:31 row_mask:0xc bank_mask:0xf')
    if sdst is not None:
        b.e(f'v_readlane_b32 s{sdst}, v{v}, 63')

WS_A = 0x0; A_T1 = 0x42000
WS_U = 0x300000
WS_XN = 0x500000
WS_KEY = 0x700000
WS_WIN = 0x704000
WS_PART = 0x800000
WS_SIZE = 0x1000000
NMOE = 112
WS_ST = [0xC00000, 0xD00000, 0xE00000]
```

```python
from common import *

RS = 544
ZOFF = 8192
K1_LDS = ZOFF + 16 * RS

def gen_k1(label='k1_kernel'):
    b = B()
    e = b.e
    sX = b.s(2); sWRp = b.s(2); sWSp = b.s(2)
    srdX = b.s(4); srdWR = b.s(4); srdWS = b.s(4)
    sW = b.s(); sS2 = b.s(); sRow = b.s(); sT = b.s(); sT2 = b.s(); sT3 = b.s()
    sOnes = b.s(); sLo = b.s(); sHi = b.s(); sRed = b.s()
    sUb0 = b.s(); sUb1 = b.s(); sAo = [b.s() for _ in range(6)]
    e(f's_cmp_ge_u32 s2, 256\ns_cbranch_scc1 L_{label}_end')
    b.stamp_init()
    e(f's_load_dwordx2 {sr(sX,2)}, s[0:1], 0\ns_load_dwordx2 {sr(sWRp,2)}, s[0:1], 48\ns_load_dwordx2 {sr(sWSp,2)}, s[0:1], 96')
    vL = b.v(); vN = b.v(); vQ = b.v(); vA = b.v(); vT = b.v(); vT2 = b.v(); vT3 = b.v()
    X = b.v(4, 4); WR = b.v(4, 4)
    e(f'v_lshrrev_b32 v{vT}, 6, v0\nv_and_b32 v{vL}, 63, v0')
    e(f'v_readfirstlane_b32 s{sW}, v{vT}')
    e(f's_and_b32 s{sS2}, s2, 7\ns_lshl_b32 s{sS2}, s{sS2}, 5\ns_lshr_b32 s{sT}, s2, 3\ns_add_u32 s{sS2}, s{sS2}, s{sT}')
    e(f'v_lshlrev_b32 v{vA}, 4, v{vL}')
    e(f's_lshl_b32 s{sRow}, s{sW}, 8\ns_add_u32 s{sRow}, s{sRow}, s{sS2}\ns_lshl_b32 s{sT}, s{sRow}, 10')
    e('s_waitcnt lgkmcnt(0)')
    srd(b, srdX, sX, 0x200000)
    e(f'buffer_load_dwordx4 {vr(X,4)}, v{vA}, {sr(srdX,4)}, s{sT} offen')
    srd(b, srdWR, sWRp, 1024)
    e(f'buffer_load_dwordx4 {vr(WR,4)}, v{vA}, {sr(srdWR,4)}, 0 offen')
    srd(b, srdWS, sWSp, WS_SIZE)
    b.stamp(1)
    e(f'v_and_b32 v{vN}, 15, v{vL}\nv_lshrrev_b32 v{vQ}, 4, v{vL}')
    vNf = b.v(); vQ4 = b.v()
    e(f'v_cvt_f32_u32 v{vNf}, v{vN}\nv_lshlrev_b32 v{vT}, 2, v{vQ}\nv_cvt_f32_u32 v{vQ4}, v{vT}')
    ang = b.v(8); co = b.v(8, 2); si = b.v(8, 2)
    Mre = [b.v(4, 4), b.v(4, 4)]; Mim = [b.v(4, 4), b.v(4, 4)]
    e(f'v_mul_f32 v{vT}, {fl(1/32)}, v{vNf}\nv_mul_f32 v{ang}, v{vT}, v{vQ4}')
    for j, c in enumerate((0, 1, 2, 3, 16, 17, 18, 19)):
        if j: e(f'v_fmamk_f32 v{ang+j}, v{vT}, {fl(float(c))}, v{ang}')
    for j in range(8):
        e(f'v_cos_f32 v{co+j}, v{ang+j}\nv_sin_f32_e64 v{si+j}, -v{ang+j}')
    for i in range(4):
        e(f'v_cvt_pk_bf16_f32 v{Mre[0]+i}, v{co+2*i}, v{co+2*i+1}')
        e(f'v_cvt_pk_bf16_f32 v{Mim[0]+i}, v{si+2*i}, v{si+2*i+1}')
    for i in range(4):
        e(f'v_xor_b32 v{Mre[1]+i}, 0x80000000, v{Mre[0]+i}\nv_xor_b32 v{Mim[1]+i}, 0x80000000, v{Mim[0]+i}')
    TC = b.v(8, 2); TS = b.v(8, 2)
    for h in range(2):
        if h == 0: e(f'v_mul_f32 v{vT}, {fl(1/512)}, v{vNf}')
        else: e(f'v_add_f32 v{vT}, {fl(16/512)}, v{vT}')
        e(f'v_mul_f32 v{ang+4*h}, v{vT}, v{vQ4}')
        for r in range(1, 4): e(f'v_fmamk_f32 v{ang+4*h+r}, v{vT}, {fl(float(r))}, v{ang+4*h}')
    for j in range(8):
        e(f'v_cos_f32 v{TC+j}, v{ang+j}\nv_sin_f32 v{TS+j}, v{ang+j}')
    MB = b.v(4, 4); MNy = b.v(4, 4); MC = b.v(2, 2)
    vE2 = b.v(); vPp = b.v()
    e(f'v_and_b32 v{vE2}, 7, v{vN}\nv_lshrrev_b32 v{vPp}, 3, v{vN}')
    e(f'v_cvt_f32_u32 v{vT}, v{vE2}\nv_cvt_f32_u32 v{vT2}, v{vPp}')
    e(f'v_mul_f32 v{vT}, {fl(1/16)}, v{vT}\nv_mul_f32 v{vT2}, {fl(0.25)}, v{vT2}')
    e(f'v_fma_f32 v{ang}, v{vT}, v{vQ4}, v{vT2}')
    for r in range(1, 4): e(f'v_fmamk_f32 v{ang+r}, v{vT}, {fl(float(r))}, v{ang}')
    for r in range(4): e(f'v_cos_f32 v{co+r}, v{ang+r}\nv_sin_f32 v{si+r}, v{ang+r}')
    e(f'v_cvt_pk_f16_f32 v{MB}, v{co}, v{co+1}\nv_cvt_pk_f16_f32 v{MB+1}, v{co+2}, v{co+3}')
    e(f'v_cvt_pk_f16_f32 v{MB+2}, v{si}, v{si+1}\nv_cvt_pk_f16_f32 v{MB+3}, v{si+2}, v{si+3}')
    e(f'v_cmp_gt_u32 vcc, 8, v{vN}\nv_mov_b32 v{vT}, 0xbc003c00\nv_mov_b32 v{MNy+2}, 0\nv_mov_b32 v{MNy+3}, 0')
    e(f'v_cndmask_b32 v{MNy}, 0, v{vT}, vcc\nv_cndmask_b32 v{MNy+1}, 0, v{vT}, vcc')
    e(f'v_lshrrev_b32 v{vT}, 1, v{vN}\nv_and_b32 v{vT2}, 1, v{vN}\nv_lshlrev_b32 v{vT3}, 9, v{vQ}')
    e(f'v_add_u32 v{vT3}, s{sS2}, v{vT3}')
    e(f'v_cvt_f32_u32 v{vT}, v{vT}\nv_cvt_f32_u32 v{vT2}, v{vT2}\nv_cvt_f32_u32 v{vT3}, v{vT3}')
    e(f'v_mul_f32 v{vT3}, {fl(1/2048)}, v{vT3}\nv_mul_f32 v{vT2}, {fl(0.25)}, v{vT2}')
    e(f'v_fma_f32 v{ang}, v{vT}, v{vT3}, v{vT2}')
    e(f'v_fmamk_f32 v{ang+1}, v{vT}, {fl(0.125)}, v{ang}')
    for r in range(2): e(f'v_cos_f32 v{co+r}, v{ang+r}\nv_sin_f32 v{si+r}, v{ang+r}')
    e(f'v_cvt_pk_f16_f32 v{MC}, v{co}, v{si}\nv_cvt_pk_f16_f32 v{MC+1}, v{co+1}, v{si+1}')
    vLw = b.v(); vLr = b.v(); vZw = b.v(); vZr = b.v(); vUa = b.v(); vAa = b.v()
    e(f's_lshl_b32 s{sT}, s{sW}, 10')
    e(f'v_add_u32 v{vLw}, s{sT}, v{vA}')
    e(f'v_lshl_add_u32 v{vLr}, v{vL}, 3, s{sT}')
    e(f'v_lshrrev_b32 v{vT}, 1, v{vE2}\nv_xor_b32 v{vT}, v{vT}, v{vQ}\nv_lshlrev_b32 v{vT}, 3, v{vT}')
    e(f'v_lshl_add_u32 v{vT}, v{vE2}, 6, v{vT}')
    e(f'v_mul_u32_u24 v{vT2}, {RS}, v{vPp}\ns_mul_i32 s{sT}, s{sW}, {2*RS}\ns_add_u32 s{sT}, s{sT}, {ZOFF}')
    e(f'v_add3_u32 v{vZw}, v{vT}, v{vT2}, s{sT}')
    e(f'v_lshrrev_b32 v{vT}, 2, v{vL}\nv_mul_u32_u24 v{vT}, {RS}, v{vT}')
    e(f's_lshr_b32 s{sT}, s{sW}, 1\nv_and_b32 v{vT2}, 3, v{vL}\nv_xor_b32 v{vT2}, s{sT}, v{vT2}')
    e(f'v_lshl_add_u32 v{vT}, v{vT2}, 3, v{vT}')
    e(f's_lshl_b32 s{sT}, s{sW}, 6\ns_add_u32 s{sT}, s{sT}, {ZOFF}\nv_add_u32 v{vZr}, s{sT}, v{vT}')
    e(f's_and_b32 s{sT}, s{sRow}, 7\ns_lshl_b32 s{sT}, s{sT}, 18\ns_lshr_b32 s{sT2}, s{sRow}, 3\ns_lshl_b32 s{sT2}, s{sT2}, 4')
    e(f's_add_u32 s{sUb0}, s{sT}, s{sT2}\ns_add_u32 s{sUb0}, s{sUb0}, {hex(WS_U)}')
    e(f's_sub_u32 s{sT3}, 2048, s{sRow}\ns_and_b32 s{sT3}, s{sT3}, 2047')
    e(f's_and_b32 s{sT}, s{sT3}, 7\ns_lshl_b32 s{sT}, s{sT}, 18\ns_lshr_b32 s{sT2}, s{sT3}, 3\ns_lshl_b32 s{sT2}, s{sT2}, 4')
    e(f's_add_u32 s{sUb1}, s{sT}, s{sT2}\ns_add_u32 s{sUb1}, s{sUb1}, {hex(WS_U + 4096 + 63*8192)}')
    e(f'v_lshlrev_b32 v{vT}, 13, v{vL}\nv_add_u32 v{vT2}, s{sUb0}, v{vT}\nv_sub_u32 v{vT}, s{sUb1}, v{vT}')
    e(f'v_cmp_gt_u32 vcc, 32, v{vL}\nv_cndmask_b32 v{vUa}, v{vT}, v{vT2}, vcc')
    e(f's_mov_b32 s{sT}, {hex(2*A_T1)}\nv_mul_lo_u32 v{vT}, s{sT}, v{vQ}')
    e(f'v_lshl_add_u32 v{vT}, v{vPp}, 13, v{vT}\nv_lshl_add_u32 v{vAa}, v{vE2}, 2, v{vT}')
    e(f's_lshl_b32 s{sT}, s{sS2}, 5\ns_lshl_b32 s{sT2}, s{sW}, 15\ns_add_u32 s{sAo[0]}, s{sT}, s{sT2}')
    e(f's_add_u32 s{sAo[1]}, s{sAo[0]}, {hex(A_T1)}\ns_add_u32 s{sAo[2]}, s{sAo[0]}, 16384\ns_add_u32 s{sAo[3]}, s{sAo[1]}, 16384')
    e(f's_add_u32 s{sAo[4]}, s{sT}, 0x40000\ns_add_u32 s{sAo[5]}, s{sAo[4]}, {hex(A_T1)}')
    e(f's_mov_b32 s{sOnes}, 0x3f803f80\ns_mov_b32 s{sLo}, 0x00003f80\ns_mov_b32 s{sHi}, 0x3f800000')
    D = b.v(8, 2); XNr = b.v(4, 4); U = b.v(4, 4); vS = b.v(); vMb = b.v(); vDm = b.v(); vRc = b.v(2, 2); vAcc = b.v(2, 2); vMb2 = b.v(2, 2)
    b.stamp(2)
    e('s_waitcnt vmcnt(1)')
    b.stamp(3)
    e(f'v_dot2_f32_bf16 v{vS}, v{X}, s{sOnes}, 0')
    for i in range(1, 4): e(f'v_dot2_f32_bf16 v{vS}, v{X+i}, s{sOnes}, v{vS}')
    wave_red(b, 'v_add_f32', vS, sRed)
    e(f'v_mul_f32 v{vT}, s{sRed}, v{vT}') if False else None
    e(f'v_mov_b32 v{vT}, {fl(-1/512)}\nv_mul_f32 v{vT}, s{sRed}, v{vT}')
    e(f'v_cvt_pk_bf16_f32 v{vMb}, v{vT}, v{vT}\nv_and_b32 v{vMb}, 0xffff0000, v{vMb}')
    e(f'v_sub_f32 v{vDm}, v{vMb}, v{vT}')
    for i in range(4):
        e(f'v_dot2_f32_bf16 v{D+2*i}, v{X+i}, s{sLo}, v{vMb}\nv_dot2_f32_bf16 v{D+2*i+1}, v{X+i}, s{sHi}, v{vMb}')
    e(f'v_pk_mul_f32 {vr(vAcc,2)}, {vr(D,2)}, {vr(D,2)}')
    for i in range(1, 4): e(f'v_pk_fma_f32 {vr(vAcc,2)}, {vr(D+2*i,2)}, {vr(D+2*i,2)}, {vr(vAcc,2)}')
    e(f'v_add_f32 v{vS}, v{vAcc}, v{vAcc+1}')
    wave_red(b, 'v_add_f32', vS, sRed)
    e(f'v_mul_f32 v{vDm}, v{vDm}, v{vDm}\nv_mov_b32 v{vT}, {fl(1/512)}')
    e(f'v_fma_f32 v{vT}, s{sRed}, v{vT}, -v{vDm}')
    e(f'v_max_f32 v{vT}, 0, v{vT}')
    e(f'v_cvt_pk_bf16_f32 v{vT}, v{vT}, v{vT}\nv_and_b32 v{vT}, 0xffff0000, v{vT}')
    e(f'v_add_f32 v{vT}, {fl(1e-5)}, v{vT}')
    e(f'v_cvt_pk_bf16_f32 v{vT}, v{vT}, v{vT}\nv_and_b32 v{vT}, 0xffff0000, v{vT}')
    e(f'v_sqrt_f32 v{vT}, v{vT}')
    e(f'v_cvt_pk_bf16_f32 v{vT}, v{vT}, v{vT}\nv_and_b32 v{vT}, 0xffff0000, v{vT}')
    e(f'v_rcp_f32 v{vRc}, v{vT}')
    DB = b.v(8, 2)
    for i in range(4): e(f'v_cvt_pk_bf16_f32 v{XNr+i}, v{D+2*i}, v{D+2*i+1}')
    for i in range(4): e(f'v_lshlrev_b32 v{DB+2*i}, 16, v{XNr+i}\nv_and_b32 v{DB+2*i+1}, 0xffff0000, v{XNr+i}')
    for i in range(4): e(f'v_pk_mul_f32 {vr(DB+2*i,2)}, {vr(DB+2*i,2)}, {vr(vRc,2)} op_sel_hi:[1,0]')
    for i in range(4): e(f'v_cvt_pk_bf16_f32 v{XNr+i}, v{DB+2*i}, v{DB+2*i+1}')
    b.stamp(4)
    e(f'ds_write_b128 v{vLw}, {vr(XNr,4)}')
    e(f's_lshl_b32 s{sT}, s{sRow}, 10\ns_add_u32 s{sT}, s{sT}, {hex(WS_XN)}')
    e(f'buffer_store_dwordx4 {vr(XNr,4)}, v{vA}, {sr(srdWS,4)}, s{sT} offen')
    AO = b.v(4, 4)
    e(f's_waitcnt lgkmcnt(0)\nds_read_b64_tr_b16 {vr(AO,2)}, v{vLr}\nds_read_b64_tr_b16 {vr(AO+2,2)}, v{vLr} offset:512')
    for i in range(4): e(f'v_pk_add_f32 {vr(D+2*i,2)}, {vr(D+2*i,2)}, {vr(DB+2*i,2)}')
    e(f'v_mov_b32 v{vMb2}, v{vMb}')
    for i in range(4): e(f'v_pk_add_f32 {vr(D+2*i,2)}, {vr(D+2*i,2)}, {vr(vMb2,2)} op_sel_hi:[1,0] neg_lo:[0,1] neg_hi:[0,1]')
    for i in range(4): e(f'v_cvt_pk_bf16_f32 v{U+i}, v{D+2*i}, v{D+2*i+1}')
    e(f'buffer_store_dwordx4 {vr(U,4)}, v{vUa}, {sr(srdWS,4)}, 0 offen')
    Dre = [b.v(4, 4), b.v(4, 4)]; Dim = [b.v(4, 4), b.v(4, 4)]
    e('s_waitcnt lgkmcnt(0)')
    for h in range(2):
        e(f'v_mfma_f32_16x16x32_bf16 {vr(Dre[h],4)}, {vr(AO,4)}, {vr(Mre[h],4)}, 0')
        e(f'v_mfma_f32_16x16x32_bf16 {vr(Dim[h],4)}, {vr(AO,4)}, {vr(Mim[h],4)}, 0')
    e('s_waitcnt vmcnt(2)')
    e(f'v_dot2_f32_bf16 v{vS}, v{XNr}, v{WR}, 0')
    for i in range(1, 4): e(f'v_dot2_f32_bf16 v{vS}, v{XNr+i}, v{WR+i}, v{vS}')
    OB = [b.v(4, 4), b.v(4, 4)]; TR = b.v(4, 2); TI = b.v(4, 2)
    DBb = [b.v(4, 4), b.v(4, 4)]; DNy = b.v(4, 4)
    for h in range(2):
        for p in range(2):
            a = Dre[h] + 2*p; bb = Dim[h] + 2*p; c = TC + 4*h + 2*p; s = TS + 4*h + 2*p
            e(f'v_pk_mul_f32 {vr(TR+2*p,2)}, {vr(a,2)}, {vr(c,2)}\nv_pk_mul_f32 {vr(TI+2*p,2)}, {vr(bb,2)}, {vr(c,2)}')
            e(f'v_pk_fma_f32 {vr(TR+2*p,2)}, {vr(bb,2)}, {vr(s,2)}, {vr(TR+2*p,2)}')
            e(f'v_pk_fma_f32 {vr(TI+2*p,2)}, {vr(a,2)}, {vr(s,2)}, {vr(TI+2*p,2)} neg_lo:[1,0,0] neg_hi:[1,0,0]')
        e(f'v_cvt_pk_f16_f32 v{OB[h]}, v{TR}, v{TR+1}\nv_cvt_pk_f16_f32 v{OB[h]+1}, v{TR+2}, v{TR+3}')
        e(f'v_cvt_pk_f16_f32 v{OB[h]+2}, v{TI}, v{TI+1}\nv_cvt_pk_f16_f32 v{OB[h]+3}, v{TI+2}, v{TI+3}')
        e(f'v_mfma_f32_16x16x32_f16 {vr(DBb[h],4)}, {vr(OB[h],4)}, {vr(MB,4)}, 0')
        if h == 0: e(f'v_mfma_f32_16x16x32_f16 {vr(DNy,4)}, {vr(OB[h],4)}, {vr(MNy,4)}, 0')
    wave_red(b, 'v_add_f32', vS, None)
    e(f'v_cvt_pk_bf16_f32 v{vS}, v{vS}, v{vS}\nv_readlane_b32 s{sRed}, v{vS}, 63')
    e(f's_ashr_i32 s{sT}, s{sRed}, 31\ns_or_b32 s{sT}, s{sT}, 0x80000000\ns_xor_b32 s{sRed}, s{sRed}, s{sT}\ns_and_b32 s{sRed}, s{sRed}, 0xffff0000')
    e(f's_sub_u32 s{sT}, 2047, s{sRow}\ns_or_b32 s{sRed}, s{sRed}, s{sT}')
    ZO = b.v(4, 2)
    for h in range(2):
        e(f'v_cvt_pk_f16_f32 v{ZO+2*h}, v{DBb[h]}, v{DBb[h]+1}\nv_cvt_pk_f16_f32 v{ZO+2*h+1}, v{DBb[h]+2}, v{DBb[h]+3}')
        e(f'ds_write_b64 v{vZw}, {vr(ZO+2*h,2)} offset:{32*h}')
    e(f'v_cvt_f16_f32 v{vT}, v{DNy}\nv_mov_b32 v{vT2}, s{sRed}')
    e(f's_lshl_b32 s{sT}, s2, 5\ns_lshl_b32 s{sT2}, s{sW}, 2\ns_add_u32 s{sT}, s{sT}, s{sT2}\ns_add_u32 s{sT}, s{sT}, {hex(WS_KEY)}')
    e(f's_mov_b64 exec, 0x101\nds_write_b16 v{vZw}, v{vT} offset:512')
    e(f's_mov_b64 exec, 1\nbuffer_store_dword v{vT2}, v{vA}, {sr(srdWS,4)}, s{sT} offen\ns_mov_b64 exec, -1')
    b.stamp(5)
    e('s_waitcnt lgkmcnt(0)\ns_barrier')
    b.stamp(6)
    BC = [b.v(2, 2), b.v(2, 2), b.v(2, 2)]; DC = [b.v(4, 4), b.v(4, 4), b.v(4, 4)]; O = b.v(6)
    e(f'ds_read_b64_tr_b16 {vr(BC[0],2)}, v{vZr}\nds_read_b64_tr_b16 {vr(BC[1],2)}, v{vZr} offset:32')
    e(f'ds_read_b64_tr_b16 {vr(BC[2],2)}, v{vZr} offset:512')
    e('s_waitcnt lgkmcnt(2)')
    e(f'v_mfma_f32_16x16x16_f16 {vr(DC[0],4)}, {vr(MC,2)}, {vr(BC[0],2)}, 0\ns_waitcnt lgkmcnt(1)')
    e(f'v_mfma_f32_16x16x16_f16 {vr(DC[1],4)}, {vr(MC,2)}, {vr(BC[1],2)}, 0\ns_waitcnt lgkmcnt(0)')
    e(f'v_mfma_f32_16x16x16_f16 {vr(DC[2],4)}, {vr(MC,2)}, {vr(BC[2],2)}, 0')
    for T in range(2):
        for p in range(2):
            e(f'v_cvt_pk_f16_f32 v{O+2*T+p}, v{DC[T]+2*p}, v{DC[T]+2*p+1}')
            e(f'buffer_store_dword v{O+2*T+p}, v{vAa}, {sr(srdWS,4)}, s{sAo[2*T+p]} offen')
    e(f's_cmp_lg_u32 s{sW}, 0\ns_cbranch_scc1 L_{label}_st')
    e(f'v_cvt_pk_f16_f32 v{O+4}, v{DC[2]}, v{DC[2]+1}\nv_cvt_pk_f16_f32 v{O+5}, v{DC[2]+2}, v{DC[2]+3}')
    e(f's_mov_b32 exec_lo, 0x00010001\ns_mov_b32 exec_hi, 0x00010001')
    e(f'buffer_store_dword v{O+4}, v{vAa}, {sr(srdWS,4)}, s{sAo[4]} offen\nbuffer_store_dword v{O+5}, v{vAa}, {sr(srdWS,4)}, s{sAo[5]} offen')
    e(f'L_{label}_st:')
    b.stamp_out(srdWS, WS_ST[0])
    e(f'L_{label}_end:\ns_endpgm')
    return b
```

```python
from common import *

K2_LDS = 56 * 1024

def fft2_body(b, label):
    e = b.e
    sO = b.s(2); sWSp = b.s(2); srdO = b.s(4); srdWS = b.s(4)
    sW = b.s(); sT1 = b.s(); sG = b.s(); sT = b.s(); sT2 = b.s(); sLo = b.s(); sHi = b.s()
    b.stamp_init()
    e(f's_load_dwordx2 {sr(sO,2)}, s[0:1], 80\ns_load_dwordx2 {sr(sWSp,2)}, s[0:1], 96')
    vL = b.v(); vN = b.v(); vQ = b.v(); vT = b.v(); vT2 = b.v(); vT3 = b.v(); vPa = b.v(); vUa = b.v()
    P = b.v(8, 4); U = b.v(4, 4)
    e(f'v_lshrrev_b32 v{vT}, 6, v0\nv_and_b32 v{vL}, 63, v0')
    e(f'v_readfirstlane_b32 s{sW}, v{vT}')
    e(f's_and_b32 s{sT1}, s2, 7\ns_lshr_b32 s{sG}, s2, 3')
    e(f'v_and_b32 v{vN}, 15, v{vL}\nv_lshrrev_b32 v{vQ}, 4, v{vL}')
    e(f'v_lshlrev_b32 v{vPa}, 11, v{vQ}\nv_lshl_add_u32 v{vPa}, v{vN}, 5, v{vPa}\nv_lshlrev_b32 v{vUa}, 4, v0')
    e(f's_mul_i32 s{sT}, s{sT1}, {hex(A_T1)}\ns_lshl_b32 s{sT2}, s{sG}, 13\ns_add_u32 s{sT}, s{sT}, s{sT2}')
    sPo = b.s(); sUo = b.s()
    e(f's_lshl_b32 s{sPo}, s{sW}, 3\ns_cmp_eq_u32 s{sW}, 4\ns_cselect_b32 s{sPo}, 8192, s{sPo}\ns_add_u32 s{sPo}, s{sPo}, s{sT}')
    e(f's_lshl_b32 s{sUo}, s{sT1}, 18\ns_add_u32 s{sUo}, s{sUo}, s{sT2}\ns_add_u32 s{sUo}, s{sUo}, {hex(WS_U)}')
    e('s_waitcnt lgkmcnt(0)')
    srd(b, srdWS, sWSp, WS_SIZE)
    e(f's_cmp_gt_u32 s{sW}, 4\ns_cbranch_scc1 L_{label}_noP')
    for i in range(4): e(f'buffer_load_dwordx2 {vr(P+2*i,2)}, v{vPa}, {sr(srdWS,4)}, s{sPo} offen offset:{512*i}')
    e(f'L_{label}_noP:')
    e(f'buffer_load_dwordx4 {vr(U,4)}, v{vUa}, {sr(srdWS,4)}, s{sUo} offen')
    b.stamp(1)
    srd(b, srdO, sO, 0x200000)
    vOa = b.v(); vYr = b.v(); vYw = b.v()
    e(f'v_and_b32 v{vT}, 255, v0\nv_lshl_add_u32 v{vT2}, v{vT}, 3, s{sT1}')
    e(f'v_sub_u32 v{vT3}, 0x800, v{vT2}\nv_and_b32 v{vT3}, 0x7ff, v{vT3}')
    e(f's_lshl_b32 s{sT}, s{sG}, 4\ns_sub_u32 s{sT2}, 1008, s{sT}\ns_cmp_lt_u32 s{sW}, 4\ns_cselect_b32 s{sT}, s{sT}, s{sT2}')
    e(f's_cselect_b64 vcc, -1, 0')
    e(f'v_cndmask_b32 v{vT2}, v{vT3}, v{vT2}, vcc\nv_lshl_add_u32 v{vOa}, v{vT2}, 10, s{sT}')
    e(f'v_bfe_u32 v{vT2}, v{vT}, 5, 2\nv_lshlrev_b32 v{vT2}, 4, v{vT2}\nv_lshlrev_b32 v{vT}, 2, v{vT}\nv_xor_b32 v{vYr}, v{vT}, v{vT2}')
    e(f's_mov_b32 s{sLo}, 0x00003f80\ns_mov_b32 s{sHi}, 0x3f800000')
    e(f's_cmp_gt_u32 s{sW}, 4\ns_cbranch_scc1 L_{label}_bar')
    e(f'v_bfe_u32 v{vT}, v{vN}, 1, 2\nv_xor_b32 v{vT}, v{vT}, v{vQ}\nv_lshlrev_b32 v{vT}, 4, v{vT}\nv_lshl_add_u32 v{vT}, v{vN}, 6, v{vT}')
    e(f's_lshl_b32 s{sT}, s{sW}, 11\nv_add_u32 v{vYw}, s{sT}, v{vT}')
    vNf = b.v(); vQ4 = b.v(); ang = b.v(4); co = b.v(4, 2); si = b.v(4, 2)
    Br = b.v(4, 4); Bi = b.v(4, 4); B2 = b.v(4, 4); TC = b.v(4, 2); TS = b.v(4, 2)
    e(f'v_cvt_f32_u32 v{vNf}, v{vN}\nv_lshlrev_b32 v{vT}, 2, v{vQ}\nv_cvt_f32_u32 v{vQ4}, v{vT}')
    e(f'v_mul_f32 v{vT}, {fl(1/16)}, v{vNf}\nv_mul_f32 v{ang}, v{vT}, v{vQ4}')
    for r in range(1, 4): e(f'v_fmamk_f32 v{ang+r}, v{vT}, {fl(float(r))}, v{ang}')
    for r in range(4): e(f'v_cos_f32 v{co+r}, v{ang+r}\nv_sin_f32 v{si+r}, v{ang+r}')
    pi = (0, 2, 1, 3)
    for i in range(4):
        e(f'v_cvt_pk_f16_f32 v{Br+i}, v{co+pi[i]}, v{si+pi[i]}\nv_cvt_pk_f16_f32 v{Bi+i}, -v{si+pi[i]}, v{co+pi[i]}')
    for r in range(4): e(f'v_mul_f32 v{co+r}, 4.0, v{co+r}\nv_mul_f32 v{si+r}, 4.0, v{si+r}\nv_mul_f32 v{ang+r}, {fl(1/16)}, v{ang+r}')
    e(f'v_cvt_pk_f16_f32 v{B2}, v{co}, v{co+1}\nv_cvt_pk_f16_f32 v{B2+1}, v{co+2}, v{co+3}')
    e(f'v_cvt_pk_f16_f32 v{B2+2}, v{si}, v{si+1}\nv_cvt_pk_f16_f32 v{B2+3}, v{si+2}, v{si+3}')
    for r in range(4): e(f'v_cos_f32 v{TC+r}, v{ang+r}\nv_sin_f32 v{TS+r}, v{ang+r}')
    for r in range(4): e(f'v_mul_f32 v{TC+r}, {fl(0.25)}, v{TC+r}\nv_mul_f32 v{TS+r}, {fl(0.25)}, v{TS+r}')
    Dr = [b.v(4, 4), b.v(4, 4)]; Di = [b.v(4, 4), b.v(4, 4)]; OB = [b.v(4, 4), b.v(4, 4)]; TR = b.v(4, 2); TI = b.v(4, 2); D2 = [b.v(4, 4), b.v(4, 4)]
    b.stamp(2)
    e('s_waitcnt vmcnt(1)')
    b.stamp(3)
    e(f'v_swap_b32 v{P+1}, v{P+4}\nv_swap_b32 v{P+3}, v{P+6}')
    for c in range(2):
        e(f'v_mfma_f32_16x16x32_f16 {vr(Dr[c],4)}, {vr(P+4*c,4)}, {vr(Br,4)}, 0')
        e(f'v_mfma_f32_16x16x32_f16 {vr(Di[c],4)}, {vr(P+4*c,4)}, {vr(Bi,4)}, 0')
    for c in range(2):
        for p in range(2):
            a = Dr[c] + 2*p; bb = Di[c] + 2*p; cc = TC + 2*p; s = TS + 2*p
            e(f'v_pk_mul_f32 {vr(TR+2*p,2)}, {vr(a,2)}, {vr(cc,2)}\nv_pk_mul_f32 {vr(TI+2*p,2)}, {vr(bb,2)}, {vr(cc,2)}')
            e(f'v_pk_fma_f32 {vr(TR+2*p,2)}, {vr(bb,2)}, {vr(s,2)}, {vr(TR+2*p,2)}')
            e(f'v_pk_fma_f32 {vr(TI+2*p,2)}, {vr(a,2)}, {vr(s,2)}, {vr(TI+2*p,2)} neg_lo:[1,0,0] neg_hi:[1,0,0]')
        e(f'v_cvt_pk_f16_f32 v{OB[c]}, v{TR}, v{TR+1}\nv_cvt_pk_f16_f32 v{OB[c]+1}, v{TR+2}, v{TR+3}')
        e(f'v_cvt_pk_f16_f32 v{OB[c]+2}, v{TI}, v{TI+1}\nv_cvt_pk_f16_f32 v{OB[c]+3}, v{TI+2}, v{TI+3}')
        e(f'v_mfma_f32_16x16x32_f16 {vr(D2[c],4)}, {vr(OB[c],4)}, {vr(B2,4)}, 0')
    for c in range(2): e(f'ds_write_b128 v{vYw}, {vr(D2[c],4)} offset:{1024*c}')
    e(f's_waitcnt lgkmcnt(0)\ns_nop 7\nL_{label}_bar:')
    b.stamp(4)
    e('s_barrier')
    b.stamp(5)
    Y = b.v(8); O = b.v(4, 4)
    e(f's_cmp_lt_u32 s{sW}, 4\ns_cbranch_scc0 L_{label}_mir')
    for j in range(8): e(f'ds_read_b32 v{Y+j}, v{vYr} offset:{1024*j}')
    e(f's_branch L_{label}_fin\nL_{label}_mir:')
    for j in range(8): e(f'ds_read_b32 v{Y+j}, v{vYr} offset:{1024*(8-j)}')
    e(f'L_{label}_fin:\ns_waitcnt vmcnt(0) lgkmcnt(0)')
    for i in range(4):
        e(f'v_dot2_f32_bf16 v{Y+2*i}, v{U+i}, s{sLo}, v{Y+2*i}\nv_dot2_f32_bf16 v{Y+2*i+1}, v{U+i}, s{sHi}, v{Y+2*i+1}')
    for i in range(4): e(f'v_cvt_pk_bf16_f32 v{O+i}, v{Y+2*i}, v{Y+2*i+1}')
    e(f'buffer_store_dwordx4 {vr(O,4)}, v{vOa}, {sr(srdO,4)}, 0 offen')
    b.stamp(6)
    b.stamp_out(srdWS, WS_ST[1])
    e('s_endpgm')

def bf16r(b, v, n=1):
    e = b.e
    if n == 1:
        e(f'v_cvt_pk_bf16_f32 v{v}, v{v}, v{v}\nv_and_b32 v{v}, 0xffff0000, v{v}')
    else:
        for i in range(0, n, 2):
            e(f'v_cvt_pk_bf16_f32 v{v+i+1}, v{v+i}, v{v+i+1}')
        for i in range(0, n, 2):
            e(f'v_lshlrev_b32 v{v+i}, 16, v{v+i+1}\nv_and_b32 v{v+i+1}, 0xffff0000, v{v+i+1}')

def moe_body(b, label):
    e = b.e
    sGp = b.s(4, 4); sDp = b.s(2); sWSp = b.s(2); srdW = b.s(4); srdD = b.s(4); srdWS = b.s(4)
    sW = b.s(); sJ = b.s(); sT = b.s(); sT2 = b.s(); sKq = b.s(); sWh = b.s(); sWin = b.s(); sM = b.s(2)
    b.stamp_init()
    e(f's_load_dwordx4 {sr(sGp,4)}, s[0:1], 56\ns_load_dwordx2 {sr(sDp,2)}, s[0:1], 72\ns_load_dwordx2 {sr(sWSp,2)}, s[0:1], 96')
    vL = b.v(); vN = b.v(); vQ = b.v(); vT = b.v(); vT2 = b.v(); vT3 = b.v(); vKa = b.v(); vWa = b.v(); vDa = b.v()
    K = b.v(4, 4)
    e(f'v_lshrrev_b32 v{vT}, 6, v0\nv_and_b32 v{vL}, 63, v0')
    e(f'v_readfirstlane_b32 s{sW}, v{vT}')
    e(f's_sub_u32 s{sJ}, s2, 256')
    e(f'v_and_b32 v{vN}, 15, v{vL}\nv_lshrrev_b32 v{vQ}, 4, v{vL}\nv_lshlrev_b32 v{vKa}, 4, v0')
    e(f's_and_b32 s{sKq}, s{sW}, 3\ns_lshr_b32 s{sWh}, s{sW}, 2')
    e(f'v_bfe_u32 v{vT}, v{vL}, 3, 2\nv_lshlrev_b32 v{vT}, 3, v{vT}\nv_bfe_u32 v{vT2}, v{vL}, 5, 1\nv_lshl_add_u32 v{vT}, v{vT2}, 2, v{vT}')
    e(f'v_bfe_u32 v{vT2}, v{vL}, 1, 2\nv_add_u32 v{vT}, v{vT}, v{vT2}\nv_mul_u32_u24 v{vT}, 3584, v{vT}')
    e(f'v_and_b32 v{vT2}, 1, v{vL}\nv_lshl_add_u32 v{vWa}, v{vT2}, 4, v{vT}')
    e(f'v_lshrrev_b32 v{vT}, 3, v{vL}\nv_lshlrev_b32 v{vT}, 10, v{vT}\nv_and_b32 v{vT2}, 7, v{vL}\nv_lshl_add_u32 v{vDa}, v{vT2}, 4, v{vT}')
    e('s_waitcnt lgkmcnt(0)')
    srd(b, srdWS, sWSp, WS_SIZE)
    e(f's_mov_b32 s{sT}, {hex(WS_KEY)}\nbuffer_load_dwordx4 {vr(K,4)}, v{vKa}, {sr(srdWS,4)}, s{sT} offen')
    e(f's_cmp_eq_u32 s{sWh}, 0\ns_cselect_b32 s{srdW}, s{sGp}, s{sGp+2}\ns_cselect_b32 s{srdW+1}, s{sGp+1}, s{sGp+3}')
    e(f's_mov_b32 s{srdW+2}, {512*3584}\ns_mov_b32 s{srdW+3}, 0x20000')
    srd(b, srdD, sDp, 1792 * 1024)
    e(f's_mul_i32 s{sT}, s{sKq}, {128*3584}\ns_lshl_b32 s{sT2}, s{sJ}, 5\ns_add_u32 s{sT}, s{sT}, s{sT2}')
    e(f's_lshl_b32 s{sT2}, s{sW}, 12\ns_mov_b32 m0, s{sT2}')
    for i in range(4):
        e(f'buffer_load_dwordx4 v{vWa}, {sr(srdW,4)}, s{sT} offen offset:{1024*i} lds')
        if i < 3: e(f's_add_u32 s{sT}, s{sT}, {32*3584 - 1024}')
    e(f's_lshl_b32 s{sT}, s{sJ}, 14\ns_lshl_b32 s{sT2}, s{sW}, 7\ns_add_u32 s{sT}, s{sT}, s{sT2}')
    e(f's_lshl_b32 s{sT2}, s{sW}, 11\ns_add_u32 s{sT2}, s{sT2}, 32768\ns_mov_b32 m0, s{sT2}')
    e(f'buffer_load_dwordx4 v{vDa}, {sr(srdD,4)}, s{sT} offen lds\ns_add_u32 s{sT}, s{sT}, {8192-1024}')
    e(f'buffer_load_dwordx4 v{vDa}, {sr(srdD,4)}, s{sT} offen offset:1024 lds')
    vM = b.v(); vWv = b.v(); Kd = b.v(4)
    e(f's_mov_b32 s{sWin}, 0\nv_mov_b32 v{vWv}, 0')
    b.stamp(1)
    e('s_waitcnt vmcnt(6)')
    b.stamp(2)
    for rnd in range(8):
        for i in range(4): e(f'v_subrev_u32 v{Kd+i}, s{sWin}, v{K+i}')
        e(f'v_max3_u32 v{vM}, v{Kd}, v{Kd+1}, v{Kd+2}\nv_max_u32 v{vM}, v{vM}, v{Kd+3}')
        wave_red(b, 'v_max_u32', vM, sT)
        e(f's_add_u32 s{sWin}, s{sWin}, s{sT}')
        e(f'v_writelane_b32 v{vWv}, s{sWin}, {rnd}')
    e(f's_lshl_b32 s{sT}, s{sW}, 5\ns_add_u32 s{sT}, s{sT}, {48*1024}')
    e(f'v_lshlrev_b32 v{vT2}, 2, v{vL}\nv_add_u32 v{vT}, s{sT}, v{vT2}\nv_add_u32 v{vT2}, {48*1024}, v{vT2}')
    e(f's_mov_b64 exec, 0xff\nds_write_b32 v{vT}, v{vWv}\ns_mov_b64 exec, -1\ns_waitcnt lgkmcnt(0)\ns_barrier')
    e(f'ds_read_b32 v{K}, v{vT2}\ns_mov_b32 s{sWin}, 0\ns_mov_b32 s{sM}, 0x01010101\ns_mov_b32 s{sM+1}, 0x01010101\ns_waitcnt lgkmcnt(0)')
    for rnd in range(8):
        e(f'v_subrev_u32 v{vM}, s{sWin}, v{K}')
        wave_red(b, 'v_max_u32', vM, sT)
        e(f's_add_u32 s{sWin}, s{sWin}, s{sT}')
        e(f's_mov_b64 exec, {sr(sM,2)}\nv_mov_b32 v{vWv}, s{sWin}\ns_mov_b64 exec, -1\ns_lshl_b64 {sr(sM,2)}, {sr(sM,2)}, 1')
    b.stamp(3)
    XB = b.v(16, 4); vXa = b.v()
    e(f'v_and_b32 v{vT}, 0x7ff, v{vWv}\nv_sub_u32 v{vT}, 0x7ff, v{vT}\nv_lshlrev_b32 v{vT}, 10, v{vT}\nv_lshl_add_u32 v{vXa}, v{vQ}, 4, v{vT}')
    e(f's_lshl_b32 s{sT}, s{sKq}, 8\ns_add_u32 s{sT}, s{sT}, {hex(WS_XN)}')
    for i in range(4): e(f'buffer_load_dwordx4 {vr(XB+4*i,4)}, v{vXa}, {sr(srdWS,4)}, s{sT} offen offset:{64*i}')
    e(f's_or_b32 s{sT}, s{sJ}, s{sW}\ns_cmp_lg_u32 s{sT}, 0\ns_cbranch_scc1 L_{label}_nowin')
    e(f'v_lshlrev_b32 v{vT}, 2, v{vL}\ns_mov_b32 s{sT}, {hex(WS_WIN)}\ns_mov_b64 exec, 0xff')
    e(f'buffer_store_dword v{vWv}, v{vT}, {sr(srdWS,4)}, s{sT} offen\ns_mov_b64 exec, -1\ns_waitcnt vmcnt(0)')
    e(f'L_{label}_nowin:')
    WA = b.v(16, 4); WD = b.v(8, 2); vR = b.v()
    e(f's_waitcnt vmcnt(4)\ns_lshl_b32 s{sT}, s{sW}, 12\nv_lshl_add_u32 v{vR}, v{vL}, 3, s{sT}')
    for i in range(4):
        e(f'ds_read_b64_tr_b16 {vr(WA+4*i,2)}, v{vR} offset:{1024*i}\nds_read_b64_tr_b16 {vr(WA+4*i+2,2)}, v{vR} offset:{1024*i+512}')
    e(f's_lshl_b32 s{sT}, s{sW}, 11\ns_add_u32 s{sT}, s{sT}, 32768\nv_lshrrev_b32 v{vT}, 2, v{vL}\nv_lshlrev_b32 v{vT}, 7, v{vT}')
    e(f'v_and_b32 v{vT2}, 3, v{vL}\nv_lshl_add_u32 v{vT}, v{vT2}, 3, v{vT}\nv_add_u32 v{vT}, s{sT}, v{vT}')
    for T in range(4): e(f'ds_read_b64_tr_b16 {vr(WD+2*T,2)}, v{vT} offset:{32*T}')
    G = b.v(4, 4); vPw = b.v(); vPr = b.v()
    PB = 49 * 1024 - 768
    PB = 48 * 1024 + 256
    e(f's_lshl_b32 s{sT}, s{sW}, 10\ns_add_u32 s{sT}, s{sT}, {PB}\nv_lshl_add_u32 v{vPw}, v{vL}, 4, s{sT}')
    e(f'v_lshrrev_b32 v{vT}, 3, v{vN}\nv_lshlrev_b32 v{vT}, 12, v{vT}\nv_and_b32 v{vT2}, 0x37, v{vL}\nv_lshl_add_u32 v{vT}, v{vT2}, 4, v{vT}\nv_add_u32 v{vPr}, {PB}, v{vT}')
    e('s_waitcnt lgkmcnt(0)')
    b.stamp(4)
    for i in range(4):
        e(f's_waitcnt vmcnt({3-i})')
        e(f'v_mfma_f32_16x16x32_bf16 {vr(G,4)}, {vr(WA+4*i,4)}, {vr(XB+4*i,4)}, {"0" if i == 0 else vr(G,4)}')
    e(f'ds_write_b128 v{vPw}, {vr(G,4)}\ns_waitcnt lgkmcnt(0)\ns_barrier')
    b.stamp(5)
    PR = b.v(16, 4)
    for i in range(4): e(f'ds_read_b128 {vr(PR+4*i,4)}, v{vPr} offset:{1024*i}')
    e('s_waitcnt lgkmcnt(0)')
    for p in range(2):
        e(f'v_pk_add_f32 {vr(PR+2*p,2)}, {vr(PR+2*p,2)}, {vr(PR+4+2*p,2)}\nv_pk_add_f32 {vr(PR+8+2*p,2)}, {vr(PR+8+2*p,2)}, {vr(PR+12+2*p,2)}')
    for p in range(2): e(f'v_pk_add_f32 {vr(PR+2*p,2)}, {vr(PR+2*p,2)}, {vr(PR+8+2*p,2)}')
    bf16r(b, PR, 4)
    Uu = PR + 4; S = PR + 8
    for r in range(4): e(f'v_mov_b32_dpp v{Uu+r}, v{PR+r} row_ror:8 row_mask:0xf bank_mask:0xf')
    for r in range(4): e(f'v_mul_f32 v{S+r}, {fl(-1.4426950408889634)}, v{PR+r}')
    for r in range(4): e(f'v_exp_f32 v{S+r}, v{S+r}')
    for r in range(4): e(f'v_add_f32 v{S+r}, 1.0, v{S+r}')
    for r in range(4): e(f'v_rcp_f32 v{S+r}, v{S+r}')
    for r in range(4): e(f'v_mul_f32 v{S+r}, v{S+r}, v{PR+r}')
    bf16r(b, S, 4)
    for r in range(4): e(f'v_mul_f32 v{S+r}, v{S+r}, v{Uu+r}')
    H = b.v(2, 2)
    e(f'v_cvt_pk_bf16_f32 v{H}, v{S}, v{S+1}\nv_cvt_pk_bf16_f32 v{H+1}, v{S+2}, v{S+3}')
    DD = b.v(16, 4); vOa = b.v()
    for T in range(4): e(f'v_mfma_f32_16x16x16_bf16 {vr(DD+4*T,4)}, {vr(WD+2*T,2)}, {vr(H,2)}, 0')
    e(f'v_lshlrev_b32 v{vT}, 11, v{vN}\nv_lshl_add_u32 v{vOa}, v{vQ}, 4, v{vT}')
    e(f's_lshl_b32 s{sT}, s{sJ}, 14\ns_lshl_b32 s{sT2}, s{sW}, 8\ns_add_u32 s{sT}, s{sT}, s{sT2}\ns_add_u32 s{sT}, s{sT}, {hex(WS_PART)}')
    e('s_mov_b32 exec_lo, 0x00ff00ff\ns_mov_b32 exec_hi, 0x00ff00ff')
    for T in range(4): e(f'buffer_store_dwordx4 {vr(DD+4*T,4)}, v{vOa}, {sr(srdWS,4)}, s{sT} offen offset:{64*T}')
    b.stamp(6)
    b.stamp_out(srdWS, WS_ST[1])
    e('s_endpgm')

def gen_k2(label='k2_kernel'):
    b = B()
    b.e(f's_cmp_ge_u32 s2, 256\ns_cbranch_scc1 L_{label}_moe')
    fft2_body(b, label)
    b.nv = 1; b.ns = 3
    b.e(f'L_{label}_moe:\ns_cmp_ge_u32 s2, {256+NMOE}\ns_cbranch_scc1 L_{label}_end')
    moe_body(b, label)
    b.e(f'L_{label}_end:\ns_endpgm')
    return b

def gen_k3(label='k3_kernel'):
    b = B(); e = b.e
    sO = b.s(2); sWSp = b.s(2); srdO = b.s(4); srdWS = b.s(4); sTok = b.s(); sCh = b.s(); sT = b.s(); sT2 = b.s(); sKey = b.s(); sKp = b.s(2)
    e(f's_cmp_ge_u32 s2, 256\ns_cbranch_scc1 L_{label}_end')
    b.stamp_init()
    e(f's_load_dwordx2 {sr(sO,2)}, s[0:1], 80\ns_load_dwordx2 {sr(sWSp,2)}, s[0:1], 96')
    vT = b.v(); vT2 = b.v(); vA = b.v(); vK = b.v(); P = b.v(28, 4); O = b.v(2, 2); vC = b.v()
    e(f's_lshr_b32 s{sTok}, s2, 5\ns_and_b32 s{sCh}, s2, 31')
    e(f'v_lshrrev_b32 v{vT}, 2, v0\nv_lshlrev_b32 v{vT}, 14, v{vT}\nv_and_b32 v{vC}, 3, v0\nv_lshl_add_u32 v{vA}, v{vC}, 4, v{vT}')
    e(f's_lshl_b32 s{sT}, s{sTok}, 11\ns_lshl_b32 s{sT2}, s{sCh}, 6\ns_add_u32 s{sT}, s{sT}, s{sT2}\ns_add_u32 s{sT}, s{sT}, {hex(WS_PART)}')
    e(f's_lshl_b32 s{sT2}, s{sTok}, 2\ns_add_u32 s{sT2}, s{sT2}, {hex(WS_WIN)}\nv_mov_b32 v{vT}, 0')
    e('s_waitcnt lgkmcnt(0)')
    srd(b, srdWS, sWSp, WS_SIZE)
    e(f'buffer_load_dword v{vK}, v{vT}, {sr(srdWS,4)}, s{sT2} offen')
    for i in range(7):
        e(f'buffer_load_dwordx4 {vr(P+4*i,4)}, v{vA}, {sr(srdWS,4)}, s{sT} offen')
        if i < 6: e(f's_add_u32 s{sT}, s{sT}, {16*16384}')
    srd(b, srdO, sO, 0x200000)
    vOa = b.v(); vRs = b.v()
    e(f's_waitcnt vmcnt(7)\nv_and_b32 v{vT}, 0x7ff, v{vK}\nv_sub_u32 v{vT}, 0x7ff, v{vT}\nv_lshlrev_b32 v{vT}, 10, v{vT}\nv_lshl_add_u32 v{vOa}, v{vC}, 3, v{vT}')
    e(f's_lshl_b32 s{sT2}, s{sCh}, 5\nbuffer_load_dwordx2 {vr(O,2)}, v{vOa}, {sr(srdO,4)}, s{sT2} offen')
    e(f'v_ashrrev_i32 v{vT}, 31, v{vK}\nv_not_b32 v{vT}, v{vT}\nv_or_b32 v{vT}, 0x80000000, v{vT}\nv_xor_b32 v{vT}, v{vT}, v{vK}\nv_and_b32 v{vT}, 0xffff0000, v{vT}')
    e(f'v_mul_f32 v{vT}, {fl(-1.4426950408889634)}, v{vT}\nv_exp_f32 v{vT}, v{vT}\nv_add_f32 v{vT}, 1.0, v{vT}\nv_rcp_f32 v{vRs}, v{vT}')
    bf16r(b, vRs)
    for i in range(1, 7):
        e(f's_waitcnt vmcnt({7-i})')
        for p in range(2): e(f'v_pk_add_f32 {vr(P+2*p,2)}, {vr(P+2*p,2)}, {vr(P+4*i+2*p,2)}')
    b.stamp(3)
    for ctl in ('row_ror:4', 'row_ror:8'):
        for r in range(4): e(f'v_add_f32_dpp v{P+r}, v{P+r}, v{P+r} {ctl} row_mask:0xf bank_mask:0xf')
    for sw in ('v_permlane16_swap_b32', 'v_permlane32_swap_b32'):
        for r in range(4): e(f'v_mov_b32 v{P+4+r}, v{P+r}')
        for r in range(4): e(f'{sw} v{P+r}, v{P+4+r}')
        for r in range(4): e(f'v_add_f32 v{P+r}, v{P+r}, v{P+4+r}')
    bf16r(b, P, 4)
    for r in range(4): e(f'v_mul_f32 v{P+r}, v{P+r}, v{vRs}')
    e('s_waitcnt vmcnt(0)')
    e(f'v_lshlrev_b32 v{P+4}, 16, v{O}\nv_and_b32 v{P+5}, 0xffff0000, v{O}\nv_lshlrev_b32 v{P+6}, 16, v{O+1}\nv_and_b32 v{P+7}, 0xffff0000, v{O+1}')
    for r in range(4): e(f'v_add_f32 v{P+r}, v{P+r}, v{P+4+r}')
    e(f'v_cvt_pk_bf16_f32 v{O}, v{P}, v{P+1}\nv_cvt_pk_bf16_f32 v{O+1}, v{P+2}, v{P+3}')
    e(f's_mov_b64 exec, 0xf\nbuffer_store_dwordx2 {vr(O,2)}, v{vOa}, {sr(srdO,4)}, s{sT2} offen')
    b.stamp_out(srdWS, WS_ST[2])
    e(f'L_{label}_end:\ns_endpgm')
    return b
```

```python
import common
from common import *
from k1 import *
from k2 import *
B.STAMPS = True
k1 = gen_k1(); k2 = gen_k2(); k3 = gen_k3()
L = k3.L
i = max(j for j,l in enumerate(L) if 'buffer_store_dwordx4 v[8:11]' in l)
ws = [l for l in L if 'buffer_store_dwordx4 v[8:11]' in l][0].split(',')[2].strip()
offs = [WS_ST[0]+4*k for k in (1,3,4,6,7)] + [WS_ST[0]+200*512+0, WS_ST[0]+200*512+28] + [WS_ST[1]+0, WS_ST[1]+12, WS_ST[1]+28] + [WS_ST[1]+256*512+4*k for k in (0,2,3,7)]
extra = f"""
s_cmp_lg_u32 s2, 0
s_cbranch_scc1 L_k3_kernel_end
s_load_dwordx2 s[76:77], s[0:1], 88
s_waitcnt lgkmcnt(0)
s_mov_b32 s72, s76
s_mov_b32 s73, s77
s_mov_b32 s74, 256
s_mov_b32 s75, 0x20000
s_mov_b64 exec, 0xffff
v_mov_b32 v13, 0
""" + "".join(f"s_mov_b32 s70, {hex(o)}\nv_writelane_b32 v13, s70, {k}\n" for k,o in enumerate(offs)) + f"""
v_mov_b32 v14, {hex(WS_ST[0])}
s_nop 4
buffer_load_dword v15, v13, {ws}, 0 offen
buffer_load_dword v16, v14, {ws}, 0 offen
s_waitcnt vmcnt(0)
v_writelane_b32 v15, s80, 14
v_writelane_b32 v15, s94, 15
v_sub_u32 v15, v15, v16
v_lshlrev_b32 v13, 2, v0
buffer_store_dword v15, v13, s[72:75], 0 offen
"""
k3.L = L[:i+1] + ['    '+x for x in extra.strip().split('\n') if x] + L[i+1:]
ls = [('k1_kernel', 256, 512, K1_LDS + 1024), ('k2_kernel', 256 + NMOE, 512, 60 * 1024), ('k3_kernel', 256, 64, 0)]
s = header(ls)
for (l, _, _, _), k in zip(ls, (k1, k2, k3)): s += kernel(l, k.text())
s += rodata([descriptor(l[0], max(k.maxv, 8)) for l, k in zip(ls, (k1, k2, k3))])
open('dbgst.s', 'w').write(s)
```

```python
import sys, struct
sys.path.insert(0, 'tools')
import hazard
from asmlib import *

def f2u(x): return struct.unpack('<I', struct.pack('<f', x))[0]
def fl(x): return hex(f2u(x))

class B:
    def __init__(self, vstart=1, sstart=3):
        self.L = []; self.used = {0}; self.sz = {}; self.ns = sstart; self.maxv = vstart
    def e(self, t):
        for l in t.strip('\n').split('\n'):
            l = l.strip()
            if not l: continue
            self.L.append(l if l.endswith(':') else '    ' + l)
    def v(self, n=1, al=None):
        al = al or (1 if n == 1 else 2)
        r = 0
        while True:
            r = (r + al - 1) // al * al
            if all((r + i) not in self.used for i in range(n)): break
            r += 1
        for i in range(n): self.used.add(r + i)
        self.sz[r] = n
        self.maxv = max(self.maxv, r + n)
        return r
    def free(self, *rs):
        for r in rs:
            for i in range(self.sz.pop(r)): self.used.remove(r + i)
    def reset(self):
        self.used = {0}; self.sz = {}; self.ns = 3
    def s(self, n=1, al=None):
        al = al or (1 if n == 1 else (2 if n == 2 else 4))
        self.ns = (self.ns + al - 1) // al * al
        r = self.ns; self.ns += n
        assert self.ns <= 80
        return r
    STAMPS = False
    def stamp(self, i):
        if B.STAMPS: self.e(f's_memrealtime s[{80+2*i}:{81+2*i}]\ns_waitcnt lgkmcnt(0)')
    def stamp_init(self):
        if B.STAMPS:
            for i in range(80, 96): self.e(f's_mov_b32 s{i}, 0')
            self.stamp(0)
    def stamp_out(self, srdws, off):
        if not B.STAMPS: return
        self.e('s_waitcnt vmcnt(0)'); self.stamp(7)
        self.e('s_mov_b64 exec, 1\nv_lshrrev_b32 v12, 6, v0\nv_lshlrev_b32 v12, 5, v12\ns_lshl_b32 s96, s2, 9')
        self.e(f's_add_u32 s96, s96, {hex(off)}')
        for i in range(8): self.e(f'v_mov_b32 v{4+i}, s{80+2*i}')
        self.e(f'buffer_store_dwordx4 v[4:7], v12, s[{srdws}:{srdws+3}], s96 offen\nbuffer_store_dwordx4 v[8:11], v12, s[{srdws}:{srdws+3}], s96 offen offset:16')
        self.maxv = max(self.maxv, 13)
    def text(self, verbose=False):
        t, n = hazard.fix(self.L, verbose)
        return '\n'.join(t) + '\n'

def vr(a, n): return f'v[{a}:{a+n-1}]'
def sr(a, n): return f's[{a}:{a+n-1}]'

def srd(b, dst, lo, size):
    b.e(f's_mov_b32 s{dst}, s{lo}\ns_mov_b32 s{dst+1}, s{lo+1}\ns_mov_b32 s{dst+2}, {hex(size)}\ns_mov_b32 s{dst+3}, 0x20000')

def wave_red(b, op, v, sdst):
    for ctl in ('row_ror:8', 'row_ror:4', 'row_ror:2', 'row_ror:1'):
        b.e(f'{op}_dpp v{v}, v{v}, v{v} {ctl} row_mask:0xf bank_mask:0xf')
    b.e(f'{op}_dpp v{v}, v{v}, v{v} row_bcast:15 row_mask:0xa bank_mask:0xf')
    b.e(f'{op}_dpp v{v}, v{v}, v{v} row_bcast:31 row_mask:0xc bank_mask:0xf')
    if sdst is not None:
        b.e(f'v_readlane_b32 s{sdst}, v{v}, 63')

WS_A = 0x0; A_T1 = 0x42000
WS_U = 0x300000
WS_XN = 0x500000
WS_KEY = 0x700000
WS_WIN = 0x704000
WS_PART = 0x800000
WS_SIZE = 0x1000000
NMOE = 112
WS_ST = [0xC00000, 0xD00000, 0xE00000]
```

```python
from common import *
WS_A = 0x0; A_T1 = 0x42000
WS_U = 0x300000
WS_KEY = 0x500000
WS_E = 0x510000
WS_WIN = 0x511000
WS_PART = 0x600000
NMOE = 56
LOG2E = 1.4426950408889634

def bf16r(b, v, n=1):
    e = b.e
    if n == 1:
        e(f'v_cvt_pk_bf16_f32 v{v}, v{v}, v{v}\nv_and_b32 v{v}, 0xffff0000, v{v}')
    else:
        for i in range(0, n, 2):
            e(f'v_cvt_pk_bf16_f32 v{v+i+1}, v{v+i}, v{v+i+1}')
        for i in range(0, n, 2):
            e(f'v_lshlrev_b32 v{v+i}, 16, v{v+i+1}\nv_and_b32 v{v+i+1}, 0xffff0000, v{v+i+1}')

def multi_red(b, op, regs):
    for ctl in ('row_ror:8 row_mask:0xf', 'row_ror:4 row_mask:0xf', 'row_ror:2 row_mask:0xf', 'row_ror:1 row_mask:0xf',
                'row_bcast:15 row_mask:0xa', 'row_bcast:31 row_mask:0xc'):
        for v in regs: b.e(f'{op}_dpp v{v}, v{v}, v{v} {ctl} bank_mask:0xf')

def twiddle_pack(b, Dr, Di, TC, TS, TR, TI, OB):
    e = b.e
    for p in range(2):
        a = Dr + 2*p; bb = Di + 2*p; c = TC + 2*p; s = TS + 2*p
        e(f'v_pk_mul_f32 {vr(TR+2*p,2)}, {vr(a,2)}, {vr(c,2)}\nv_pk_mul_f32 {vr(TI+2*p,2)}, {vr(bb,2)}, {vr(c,2)}')
        e(f'v_pk_fma_f32 {vr(TR+2*p,2)}, {vr(bb,2)}, {vr(s,2)}, {vr(TR+2*p,2)}')
        e(f'v_pk_fma_f32 {vr(TI+2*p,2)}, {vr(a,2)}, {vr(s,2)}, {vr(TI+2*p,2)} neg_lo:[1,0,0] neg_hi:[1,0,0]')
    e(f'v_cvt_pk_f16_f32 v{OB}, v{TR}, v{TR+1}\nv_cvt_pk_f16_f32 v{OB+1}, v{TR+2}, v{TR+3}')
    e(f'v_cvt_pk_f16_f32 v{OB+2}, v{TI}, v{TI+1}\nv_cvt_pk_f16_f32 v{OB+3}, v{TI+2}, v{TI+3}')
```

```python
from p_common import *
RS = 544
ZOFF = 8192
KSOFF = ZOFF + 16 * RS + 1024
FFT1_LDS = KSOFF + 64

def fft1_body(b, label, opt):
    e = b.e
    SC = opt.get('sc_a', '')
    sX = b.s(2); sWRp = b.s(2); sGp = b.s(4, 4); sDp = b.s(2); sWSp = b.s(2)
    srdX = b.s(4); srdWR = b.s(4); srdWS = b.s(4); srdP = b.s(4)
    sW = b.s(); sS2 = b.s(); sRow = b.s(); sT = b.s(); sT2 = b.s(); sT3 = b.s()
    sOnes = b.s(); sLo = b.s(); sHi = b.s(); sE = b.s(); sEp = b.s(2)
    sUb0 = b.s(); sUb1 = b.s(); sAo = [b.s() for _ in range(6)]; sMb = b.s(); sRc = b.s()
    b.stamp_init()
    e(f's_load_dwordx2 {sr(sX,2)}, s[0:1], 0\ns_load_dwordx2 {sr(sWRp,2)}, s[0:1], 48\ns_load_dwordx2 {sr(sWSp,2)}, s[0:1], 96')
    e(f's_load_dwordx4 {sr(sGp,4)}, s[0:1], 56\ns_load_dwordx2 {sr(sDp,2)}, s[0:1], 72')
    vL = b.v(); vN = b.v(); vQ = b.v(); vA = b.v(); vT = b.v(); vT2 = b.v(); vT3 = b.v(); vPf = b.v(); vDummy = b.v()
    X = b.v(4, 4); WR = b.v(4, 4)
    e(f'v_lshrrev_b32 v{vT}, 6, v0\nv_and_b32 v{vL}, 63, v0')
    e(f'v_readfirstlane_b32 s{sW}, v{vT}')
    e(f's_and_b32 s{sT3}, s2, 7\ns_lshl_b32 s{sS2}, s{sT3}, 5\ns_lshr_b32 s{sT2}, s2, 3\ns_add_u32 s{sS2}, s{sS2}, s{sT2}')
    e(f'v_lshlrev_b32 v{vA}, 4, v{vL}')
    e(f's_lshl_b32 s{sRow}, s{sW}, 8\ns_add_u32 s{sRow}, s{sRow}, s{sS2}\ns_lshl_b32 s{sT}, s{sRow}, 10')
    e('s_waitcnt lgkmcnt(0)')
    srd(b, srdWR, sWRp, 1024)
    e(f'buffer_load_dwordx4 {vr(WR,4)}, v{vA}, {sr(srdWR,4)}, 0 offen')
    srd(b, srdX, sX, 0x200000)
    e(f'buffer_load_dwordx4 {vr(X,4)}, v{vA}, {sr(srdX,4)}, s{sT} offen')
    e(f's_add_u32 s{sEp}, s{sWSp}, {hex(WS_E)}\ns_addc_u32 s{sEp+1}, s{sWSp+1}, 0\ns_load_dword s{sE}, {sr(sEp,2)}, 0')
    srd(b, srdWS, sWSp, WS_SIZE)
    if opt.get('prefetch', 1):
        e(f's_cmp_lt_u32 s{sW}, 4\ns_cbranch_scc0 L_{label}_pfd')
        e(f's_cmp_lt_u32 s{sW}, 2\ns_cselect_b32 s{srdP}, s{sGp}, s{sGp+2}\ns_cselect_b32 s{srdP+1}, s{sGp+1}, s{sGp+3}')
        e(f'v_lshrrev_b32 v{vT}, 3, v{vL}\nv_mul_u32_u24 v{vT}, 3584, v{vT}\nv_and_b32 v{vT2}, 7, v{vL}\nv_min_u32 v{vT2}, 6, v{vT2}')
        e(f'v_lshl_add_u32 v{vPf}, v{vT2}, 6, v{vT}')
        e(f's_and_b32 s{sT}, s{sW}, 1\ns_lshl_b32 s{sT}, s{sT}, 3\ns_lshl_b32 s{sT2}, s{sT2}, 4\ns_add_u32 s{sT}, s{sT}, s{sT2}\ns_mul_i32 s{sT}, s{sT}, 3584')
        e(f's_mul_i32 s{sT3}, s{sT3}, 448\ns_add_u32 s{sT}, s{sT}, s{sT3}\ns_branch L_{label}_pfj')
        e(f'L_{label}_pfd:\ns_mov_b32 s{srdP}, s{sDp}\ns_mov_b32 s{srdP+1}, s{sDp+1}')
        e(f's_and_b32 s{sT}, s{sW}, 1\ns_lshl_b32 s{sT}, s{sT}, 2\nv_lshrrev_b32 v{vT}, 4, v{vL}\nv_add_u32 v{vT}, s{sT}, v{vT}\nv_min_u32 v{vT}, 6, v{vT}')
        e(f'v_lshlrev_b32 v{vT}, 10, v{vT}\nv_and_b32 v{vT2}, 15, v{vL}\nv_lshl_add_u32 v{vPf}, v{vT2}, 6, v{vT}')
        e(f's_mul_i32 s{sT3}, s{sT3}, 224\ns_mul_i32 s{sT2}, s{sT2}, 7\ns_add_u32 s{sT}, s{sT3}, s{sT2}\ns_lshl_b32 s{sT}, s{sT}, 10')
        e(f'L_{label}_pfj:\ns_mov_b32 s{srdP+2}, {512*3584}\ns_mov_b32 s{srdP+3}, 0x20000')
        e(f'buffer_load_dword v{vDummy}, v{vPf}, {sr(srdP,4)}, s{sT} offen')
        XW = 1
    else:
        XW = 0
    b.free(vPf)
    b.stamp(1)
    e(f'v_and_b32 v{vN}, 15, v{vL}\nv_lshrrev_b32 v{vQ}, 4, v{vL}')
    vNf = b.v(); vQ4 = b.v()
    e(f'v_cvt_f32_u32 v{vNf}, v{vN}\nv_lshlrev_b32 v{vT}, 2, v{vQ}\nv_cvt_f32_u32 v{vQ4}, v{vT}')
    Mre = [b.v(4, 4), b.v(4, 4)]; Mim = [b.v(4, 4), b.v(4, 4)]
    TC = b.v(8, 2); TS = b.v(8, 2); MB = b.v(4, 4); MNy = b.v(4, 4); MC = b.v(2, 2)
    ang = b.v(8); co = b.v(8, 2); si = b.v(8, 2)
    e(f'v_mul_f32 v{vT}, {fl(1/32)}, v{vNf}\nv_mul_f32 v{ang}, v{vT}, v{vQ4}')
    for j, c in enumerate((0, 1, 2, 3, 16, 17, 18, 19)):
        if j: e(f'v_fmamk_f32 v{ang+j}, v{vT}, {fl(float(c))}, v{ang}')
    for j in range(8):
        e(f'v_cos_f32 v{co+j}, v{ang+j}\nv_sin_f32_e64 v{si+j}, -v{ang+j}')
    for i in range(4):
        e(f'v_cvt_pk_bf16_f32 v{Mre[0]+i}, v{co+2*i}, v{co+2*i+1}')
        e(f'v_cvt_pk_bf16_f32 v{Mim[0]+i}, v{si+2*i}, v{si+2*i+1}')
    for i in range(4):
        e(f'v_xor_b32 v{Mre[1]+i}, 0x80000000, v{Mre[0]+i}\nv_xor_b32 v{Mim[1]+i}, 0x80000000, v{Mim[0]+i}')
    for h in range(2):
        if h == 0: e(f'v_mul_f32 v{vT}, {fl(1/512)}, v{vNf}')
        else: e(f'v_add_f32 v{vT}, {fl(16/512)}, v{vT}')
        e(f'v_mul_f32 v{ang+4*h}, v{vT}, v{vQ4}')
        for r in range(1, 4): e(f'v_fmamk_f32 v{ang+4*h+r}, v{vT}, {fl(float(r))}, v{ang+4*h}')
    for j in range(8):
        e(f'v_cos_f32 v{TC+j}, v{ang+j}\nv_sin_f32 v{TS+j}, v{ang+j}')
    vE2 = b.v(); vPp = b.v()
    e(f'v_and_b32 v{vE2}, 7, v{vN}\nv_lshrrev_b32 v{vPp}, 3, v{vN}')
    e(f'v_cvt_f32_u32 v{vT}, v{vE2}\nv_cvt_f32_u32 v{vT2}, v{vPp}')
    e(f'v_mul_f32 v{vT}, {fl(1/16)}, v{vT}\nv_mul_f32 v{vT2}, {fl(0.25)}, v{vT2}')
    e(f'v_fma_f32 v{ang}, v{vT}, v{vQ4}, v{vT2}')
    for r in range(1, 4): e(f'v_fmamk_f32 v{ang+r}, v{vT}, {fl(float(r))}, v{ang}')
    for r in range(4): e(f'v_cos_f32 v{co+r}, v{ang+r}\nv_sin_f32 v{si+r}, v{ang+r}')
    e(f'v_cvt_pk_f16_f32 v{MB}, v{co}, v{co+1}\nv_cvt_pk_f16_f32 v{MB+1}, v{co+2}, v{co+3}')
    e(f'v_cvt_pk_f16_f32 v{MB+2}, v{si}, v{si+1}\nv_cvt_pk_f16_f32 v{MB+3}, v{si+2}, v{si+3}')
    e(f'v_cmp_gt_u32 vcc, 8, v{vN}\nv_mov_b32 v{vT}, 0xbc003c00\nv_mov_b32 v{MNy+2}, 0\nv_mov_b32 v{MNy+3}, 0')
    e(f'v_cndmask_b32 v{MNy}, 0, v{vT}, vcc\nv_cndmask_b32 v{MNy+1}, 0, v{vT}, vcc')
    e(f'v_lshrrev_b32 v{vT}, 1, v{vN}\nv_and_b32 v{vT2}, 1, v{vN}\nv_lshlrev_b32 v{vT3}, 9, v{vQ}')
    e(f'v_add_u32 v{vT3}, s{sS2}, v{vT3}')
    e(f'v_cvt_f32_u32 v{vT}, v{vT}\nv_cvt_f32_u32 v{vT2}, v{vT2}\nv_cvt_f32_u32 v{vT3}, v{vT3}')
    e(f'v_mul_f32 v{vT3}, {fl(1/2048)}, v{vT3}\nv_mul_f32 v{vT2}, {fl(0.25)}, v{vT2}')
    e(f'v_fma_f32 v{ang}, v{vT}, v{vT3}, v{vT2}')
    e(f'v_fmamk_f32 v{ang+1}, v{vT}, {fl(0.125)}, v{ang}')
    for r in range(2): e(f'v_cos_f32 v{co+r}, v{ang+r}\nv_sin_f32 v{si+r}, v{ang+r}')
    e(f'v_cvt_pk_f16_f32 v{MC}, v{co}, v{si}\nv_cvt_pk_f16_f32 v{MC+1}, v{co+1}, v{si+1}')
    b.free(ang, co, si, vNf, vQ4)
    vLw = b.v(); vLr = b.v(); vZw = b.v(); vZr = b.v(); vUa = b.v(); vAa = b.v(); vKr = b.v(); vKw = b.v()
    e(f's_lshl_b32 s{sT}, s{sW}, 10')
    e(f'v_add_u32 v{vLw}, s{sT}, v{vA}')
    e(f'v_lshl_add_u32 v{vLr}, v{vL}, 3, s{sT}')
    e(f'v_lshrrev_b32 v{vT}, 1, v{vE2}\nv_xor_b32 v{vT}, v{vT}, v{vQ}\nv_lshlrev_b32 v{vT}, 3, v{vT}')
    e(f'v_lshl_add_u32 v{vT}, v{vE2}, 6, v{vT}')
    e(f'v_mul_u32_u24 v{vT2}, {RS}, v{vPp}\ns_mul_i32 s{sT}, s{sW}, {2*RS}\ns_add_u32 s{sT}, s{sT}, {ZOFF}')
    e(f'v_add3_u32 v{vZw}, v{vT}, v{vT2}, s{sT}')
    e(f'v_lshrrev_b32 v{vT}, 2, v{vL}\nv_mul_u32_u24 v{vT}, {RS}, v{vT}')
    e(f's_lshr_b32 s{sT}, s{sW}, 1\nv_and_b32 v{vT2}, 3, v{vL}\nv_xor_b32 v{vT2}, s{sT}, v{vT2}')
    e(f'v_lshl_add_u32 v{vT}, v{vT2}, 3, v{vT}')
    e(f's_lshl_b32 s{sT}, s{sW}, 6\ns_add_u32 s{sT}, s{sT}, {ZOFF}\nv_add_u32 v{vZr}, s{sT}, v{vT}')
    e(f's_and_b32 s{sT}, s{sRow}, 7\ns_lshl_b32 s{sT}, s{sT}, 18\ns_lshr_b32 s{sT2}, s{sRow}, 3\ns_lshl_b32 s{sT2}, s{sT2}, 4')
    e(f's_add_u32 s{sUb0}, s{sT}, s{sT2}\ns_add_u32 s{sUb0}, s{sUb0}, {hex(WS_U)}')
    e(f's_sub_u32 s{sT3}, 2048, s{sRow}\ns_and_b32 s{sT3}, s{sT3}, 2047')
    e(f's_and_b32 s{sT}, s{sT3}, 7\ns_lshl_b32 s{sT}, s{sT}, 18\ns_lshr_b32 s{sT2}, s{sT3}, 3\ns_lshl_b32 s{sT2}, s{sT2}, 4')
    e(f's_add_u32 s{sUb1}, s{sT}, s{sT2}\ns_add_u32 s{sUb1}, s{sUb1}, {hex(WS_U + 4096 + 63*8192)}')
    e(f'v_lshlrev_b32 v{vT}, 13, v{vL}\nv_add_u32 v{vT2}, s{sUb0}, v{vT}\nv_sub_u32 v{vT}, s{sUb1}, v{vT}')
    e(f'v_cmp_gt_u32 vcc, 32, v{vL}\nv_cndmask_b32 v{vUa}, v{vT}, v{vT2}, vcc')
    e(f's_mov_b32 s{sT}, {hex(2*A_T1)}\nv_mul_lo_u32 v{vT}, s{sT}, v{vQ}')
    e(f'v_lshl_add_u32 v{vT}, v{vPp}, 13, v{vT}\nv_lshl_add_u32 v{vAa}, v{vE2}, 2, v{vT}')
    e(f's_lshl_b32 s{sT}, s{sS2}, 5\ns_lshl_b32 s{sT2}, s{sW}, 15\ns_add_u32 s{sAo[0]}, s{sT}, s{sT2}')
    e(f's_add_u32 s{sAo[1]}, s{sAo[0]}, {hex(A_T1)}\ns_add_u32 s{sAo[2]}, s{sAo[0]}, 16384\ns_add_u32 s{sAo[3]}, s{sAo[1]}, 16384')
    e(f's_add_u32 s{sAo[4]}, s{sT}, 0x40000\ns_add_u32 s{sAo[5]}, s{sAo[4]}, {hex(A_T1)}')
    e(f's_mov_b32 s{sOnes}, 0x3f803f80\ns_mov_b32 s{sLo}, 0x00003f80\ns_mov_b32 s{sHi}, 0x3f800000')
    e(f's_lshl_b32 s{sT}, s{sW}, 3\ns_add_u32 s{sT}, s{sT}, {KSOFF}\nv_mov_b32 v{vKw}, s{sT}')
    e(f'v_lshlrev_b32 v{vT}, 3, v{vE2}\nv_lshl_add_u32 v{vT}, v{vPp}, 2, v{vT}\nv_add_u32 v{vKr}, {KSOFF}, v{vT}')
    sKeyLo = b.s(); sKL = b.s()
    e(f's_sub_u32 s{sKeyLo}, 2047, s{sRow}\ns_lshl_b32 s{sKL}, s{sS2}, 7\ns_add_u32 s{sKL}, s{sKL}, {hex(WS_KEY)}')
    b.free(vE2, vPp, vN, vQ)
    KT = b.v(2, 2); vK8 = b.v()
    e(f's_waitcnt lgkmcnt(0)\ns_add_u32 s{sE}, s{sE}, 1\ns_cselect_b32 s{sE}, 1, s{sE}\nv_mov_b32 v{KT+1}, s{sE}\nv_lshlrev_b32 v{vK8}, 3, v{vL}')
    D = b.v(8, 2); S1 = b.v(2, 2); S2 = b.v(2, 2); S3 = b.v(); S4 = b.v(); vNP = b.v(2, 2); KS = b.v(2, 2)
    b.stamp(2)
    e(f's_waitcnt vmcnt({XW})')
    b.stamp(3)
    e(f'v_readfirstlane_b32 s{sT}, v{X}')
    e(f'v_dot2_f32_bf16 v{S3}, v{X}, v{WR}, 0\nv_dot2_f32_bf16 v{S4}, v{WR}, s{sOnes}, 0')
    e(f's_lshl_b32 s{sT}, s{sT}, 16\ns_xor_b32 s{sT}, s{sT}, 0x80000000\nv_mov_b32 v{vNP}, s{sT}')
    for i in range(1, 4): e(f'v_dot2_f32_bf16 v{S3}, v{X+i}, v{WR+i}, v{S3}\nv_dot2_f32_bf16 v{S4}, v{WR+i}, s{sOnes}, v{S4}')
    for i in range(4):
        e(f'v_dot2_f32_bf16 v{D+2*i}, v{X+i}, s{sLo}, v{vNP}\nv_dot2_f32_bf16 v{D+2*i+1}, v{X+i}, s{sHi}, v{vNP}')
    e(f'v_pk_add_f32 {vr(S1,2)}, {vr(D,2)}, {vr(D+2,2)}\nv_pk_mul_f32 {vr(S2,2)}, {vr(D,2)}, {vr(D,2)}')
    e(f'v_pk_fma_f32 {vr(S2,2)}, {vr(D+2,2)}, {vr(D+2,2)}, {vr(S2,2)}')
    for i in range(2, 4):
        e(f'v_pk_add_f32 {vr(S1,2)}, {vr(S1,2)}, {vr(D+2*i,2)}\nv_pk_fma_f32 {vr(S2,2)}, {vr(D+2*i,2)}, {vr(D+2*i,2)}, {vr(S2,2)}')
    e(f'v_add_f32 v{S1}, v{S1}, v{S1+1}\nv_add_f32 v{S2}, v{S2}, v{S2+1}')
    multi_red(b, 'v_add_f32', (S3, S4, S1, S2))
    vMb = S1 + 1; vSd = S2 + 1
    e(f'v_mul_f32 v{S1}, {fl(1/512)}, v{S1}\nv_mul_f32 v{S2}, {fl(1/512)}, v{S2}')
    e(f'v_sub_f32 v{vMb}, v{S1}, v{vNP}\nv_fma_f32 v{S2}, -v{S1}, v{S1}, v{S2}')
    e(f'v_max_f32 v{S2}, 0, v{S2}\nv_cvt_pk_bf16_f32 v{vMb}, v{S2}, v{vMb}')
    e(f'v_lshlrev_b32 v{S2}, 16, v{vMb}\nv_and_b32 v{vMb}, 0xffff0000, v{vMb}')
    e(f'v_add_f32 v{S2}, {fl(1e-5)}, v{S2}\nv_fma_f32 v{S3}, -v{vMb}, v{S4}, v{S3}')
    e(f'v_cvt_pk_bf16_f32 v{S2}, v{S2}, v{S2}\nv_and_b32 v{S2}, 0xffff0000, v{S2}\nv_sqrt_f32 v{S2}, v{S2}')
    e(f'v_cvt_pk_bf16_f32 v{vSd}, v{S2}, v{vMb}\nv_lshlrev_b32 v{S2}, 16, v{vSd}\nv_rcp_f32 v{S2}, v{S2}')
    e(f'v_mov_b32 v{KS+1}, v{vSd}\nv_mul_f32 v{S3}, v{S3}, v{S2}\nv_cvt_pk_bf16_f32 v{S3}, v{S3}, v{S3}')
    e(f'v_ashrrev_i32 v{S4}, 31, v{S3}\nv_or_b32 v{S4}, 0x80000000, v{S4}\nv_xor_b32 v{S3}, v{S3}, v{S4}')
    e(f'v_and_b32 v{S3}, 0xffff0000, v{S3}\nv_or_b32 v{KS}, s{sKeyLo}, v{S3}')
    e(f's_mov_b32 exec_lo, 0\ns_mov_b32 exec_hi, 0x80000000\nds_write_b64 v{vKw}, {vr(KS,2)}\ns_mov_b64 exec, -1')
    e(f'v_readlane_b32 s{sMb}, v{vMb}, 63\nv_readlane_b32 s{sRc}, v{S2}, 63')
    e('s_waitcnt lgkmcnt(0)\ns_barrier')
    e(f's_cmp_lg_u32 s{sW}, 0\ns_cbranch_scc1 L_{label}_nokey')
    e(f'ds_read_b32 v{KT}, v{vKr}\ns_mov_b64 exec, 0xffff\ns_waitcnt lgkmcnt(0)')
    e(f'buffer_store_dwordx2 {vr(KT,2)}, v{vK8}, {sr(srdWS,4)}, s{sKL} offen sc1\ns_mov_b64 exec, -1')
    e(f'L_{label}_nokey:')
    b.stamp(4)
    b.free(KS, vKw, vKr, S3, S4, WR, X)
    vRc = S2; vC = S1
    e(f'v_sub_f32 v{vC}, -v{vNP}, s{sMb}'.replace('v_sub_f32', 'v_sub_f32_e64') + f'\nv_mov_b32 v{vRc}, s{sRc}\nv_mov_b32 v{vNP}, s{sMb}')
    for i in range(4): e(f'v_pk_add_f32 {vr(D+2*i,2)}, {vr(D+2*i,2)}, {vr(vC,2)} op_sel_hi:[1,0]')
    XNr = b.v(4, 4); DB = b.v(8, 2); U = b.v(4, 4)
    for i in range(4): e(f'v_cvt_pk_bf16_f32 v{XNr+i}, v{D+2*i}, v{D+2*i+1}')
    for i in range(4): e(f'v_lshlrev_b32 v{DB+2*i}, 16, v{XNr+i}\nv_and_b32 v{DB+2*i+1}, 0xffff0000, v{XNr+i}')
    for i in range(4): e(f'v_pk_mul_f32 {vr(DB+2*i,2)}, {vr(DB+2*i,2)}, {vr(vRc,2)} op_sel_hi:[1,0]')
    for i in range(4): e(f'v_cvt_pk_bf16_f32 v{XNr+i}, v{DB+2*i}, v{DB+2*i+1}')
    e(f'ds_write_b128 v{vLw}, {vr(XNr,4)}')
    AO = b.v(4, 4)
    e(f'ds_read_b64_tr_b16 {vr(AO,2)}, v{vLr}\nds_read_b64_tr_b16 {vr(AO+2,2)}, v{vLr} offset:512')
    for i in range(4): e(f'v_pk_add_f32 {vr(D+2*i,2)}, {vr(D+2*i,2)}, {vr(DB+2*i,2)}')
    for i in range(4): e(f'v_pk_add_f32 {vr(D+2*i,2)}, {vr(D+2*i,2)}, {vr(vNP,2)} op_sel_hi:[1,0]')
    for i in range(4): e(f'v_cvt_pk_bf16_f32 v{U+i}, v{D+2*i}, v{D+2*i+1}')
    e(f'buffer_store_dwordx4 {vr(U,4)}, v{vUa}, {sr(srdWS,4)}, 0 offen {SC}')
    b.free(D, DB, S1, S2, vNP)
    Dre = [b.v(4, 4), b.v(4, 4)]; Dim = [b.v(4, 4), b.v(4, 4)]
    e('s_waitcnt lgkmcnt(0)')
    for h in range(2):
        e(f'v_mfma_f32_16x16x32_bf16 {vr(Dre[h],4)}, {vr(AO,4)}, {vr(Mre[h],4)}, 0')
        e(f'v_mfma_f32_16x16x32_bf16 {vr(Dim[h],4)}, {vr(AO,4)}, {vr(Mim[h],4)}, 0')
    OB = [b.v(4, 4), b.v(4, 4)]; TR = b.v(4, 2); TI = b.v(4, 2)
    DBb = [b.v(4, 4), b.v(4, 4)]; DNy = b.v(4, 4)
    for h in range(2):
        twiddle_pack(b, Dre[h], Dim[h], TC + 4*h, TS + 4*h, TR, TI, OB[h])
        e(f'v_mfma_f32_16x16x32_f16 {vr(DBb[h],4)}, {vr(OB[h],4)}, {vr(MB,4)}, 0')
        if h == 0: e(f'v_mfma_f32_16x16x32_f16 {vr(DNy,4)}, {vr(OB[h],4)}, {vr(MNy,4)}, 0')
    ZO = TR
    for h in range(2):
        e(f'v_cvt_pk_f16_f32 v{ZO+2*h}, v{DBb[h]}, v{DBb[h]+1}\nv_cvt_pk_f16_f32 v{ZO+2*h+1}, v{DBb[h]+2}, v{DBb[h]+3}')
        e(f'ds_write_b64 v{vZw}, {vr(ZO+2*h,2)} offset:{32*h}')
        if h == 0:
            e(f'v_cvt_f16_f32 v{vT}, v{DNy}\ns_mov_b64 exec, 0x101\nds_write_b16 v{vZw}, v{vT} offset:512\ns_mov_b64 exec, -1')
    b.stamp(5)
    e('s_waitcnt lgkmcnt(0)\ns_barrier')
    b.stamp(6)
    b.free(*Dre, *Dim, *OB, TI)
    BC = [b.v(2, 2), b.v(2, 2), b.v(2, 2)]; DC = [b.v(4, 4), b.v(4, 4), b.v(4, 4)]; O = b.v(6)
    e(f'ds_read_b64_tr_b16 {vr(BC[0],2)}, v{vZr}\nds_read_b64_tr_b16 {vr(BC[1],2)}, v{vZr} offset:32')
    e(f'ds_read_b64_tr_b16 {vr(BC[2],2)}, v{vZr} offset:512')
    e('s_waitcnt lgkmcnt(2)')
    e(f'v_mfma_f32_16x16x16_f16 {vr(DC[0],4)}, {vr(MC,2)}, {vr(BC[0],2)}, 0\ns_waitcnt lgkmcnt(1)')
    e(f'v_mfma_f32_16x16x16_f16 {vr(DC[1],4)}, {vr(MC,2)}, {vr(BC[1],2)}, 0\ns_waitcnt lgkmcnt(0)')
    e(f'v_mfma_f32_16x16x16_f16 {vr(DC[2],4)}, {vr(MC,2)}, {vr(BC[2],2)}, 0')
    for T in range(2):
        for p in range(2):
            e(f'v_cvt_pk_f16_f32 v{O+2*T+p}, v{DC[T]+2*p}, v{DC[T]+2*p+1}')
            e(f'buffer_store_dword v{O+2*T+p}, v{vAa}, {sr(srdWS,4)}, s{sAo[2*T+p]} offen {SC}')
    e(f's_cmp_lg_u32 s{sW}, 0\ns_cbranch_scc1 L_{label}_st')
    e(f'v_cvt_pk_f16_f32 v{O+4}, v{DC[2]}, v{DC[2]+1}\nv_cvt_pk_f16_f32 v{O+5}, v{DC[2]+2}, v{DC[2]+3}')
    e(f's_mov_b32 exec_lo, 0x00010001\ns_mov_b32 exec_hi, 0x00010001')
    e(f'buffer_store_dword v{O+4}, v{vAa}, {sr(srdWS,4)}, s{sAo[4]} offen {SC}\nbuffer_store_dword v{O+5}, v{vAa}, {sr(srdWS,4)}, s{sAo[5]} offen {SC}')
    e(f'L_{label}_st:')
    b.stamp_out(srdWS, WS_ST[0])
    e('s_endpgm')
```

```python
from p_common import *
FIX = 10240
FZERO = FIX + 512
FFT2_LDS = FZERO + 32

def fft2_body(b, label, opt):
    e = b.e
    sO = b.s(2); sWSp = b.s(2); srdO = b.s(4); srdWS = b.s(4); sWin = b.s(8, 4); sWp = b.s(2)
    sW = b.s(); sT1 = b.s(); sG = b.s(); sT = b.s(); sT2 = b.s(); sLo = b.s(); sHi = b.s()
    b.stamp_init()
    e(f's_load_dwordx2 {sr(sO,2)}, s[0:1], 80\ns_load_dwordx2 {sr(sWSp,2)}, s[0:1], 96')
    vL = b.v(); vN = b.v(); vQ = b.v(); vT = b.v(); vT2 = b.v(); vT3 = b.v(); vPa = b.v(); vUa = b.v()
    P = b.v(8, 4); U = b.v(4, 4)
    e(f'v_lshrrev_b32 v{vT}, 6, v0\nv_and_b32 v{vL}, 63, v0')
    e(f'v_readfirstlane_b32 s{sW}, v{vT}')
    e(f's_and_b32 s{sT1}, s2, 7\ns_lshr_b32 s{sG}, s2, 3')
    e(f'v_and_b32 v{vN}, 15, v{vL}\nv_lshrrev_b32 v{vQ}, 4, v{vL}')
    e(f'v_lshlrev_b32 v{vPa}, 11, v{vQ}\nv_lshl_add_u32 v{vPa}, v{vN}, 5, v{vPa}\nv_lshlrev_b32 v{vUa}, 4, v0')
    e(f's_mul_i32 s{sT}, s{sT1}, {hex(A_T1)}\ns_lshl_b32 s{sT2}, s{sG}, 13\ns_add_u32 s{sT}, s{sT}, s{sT2}')
    sPo = b.s(); sUo = b.s()
    e(f's_lshl_b32 s{sPo}, s{sW}, 3\ns_cmp_eq_u32 s{sW}, 4\ns_cselect_b32 s{sPo}, 8192, s{sPo}\ns_add_u32 s{sPo}, s{sPo}, s{sT}')
    e(f's_lshl_b32 s{sUo}, s{sT1}, 18\ns_add_u32 s{sUo}, s{sUo}, s{sT2}\ns_add_u32 s{sUo}, s{sUo}, {hex(WS_U)}')
    vKa = b.v(); vK = b.v()
    e(f'v_lshrrev_b32 v{vKa}, 3, v{vL}\nv_lshlrev_b32 v{vKa}, 2, v{vKa}')
    e('s_waitcnt lgkmcnt(0)')
    srd(b, srdWS, sWSp, WS_SIZE)
    e(f's_cmp_gt_u32 s{sW}, 4\ns_cbranch_scc1 L_{label}_noP')
    for i in range(4): e(f'buffer_load_dwordx2 {vr(P+2*i,2)}, v{vPa}, {sr(srdWS,4)}, s{sPo} offen offset:{512*i}')
    e(f's_branch L_{label}_P\nL_{label}_noP:\ns_mov_b32 s{sT}, {hex(WS_WIN)}\nbuffer_load_dword v{vK}, v{vKa}, {sr(srdWS,4)}, s{sT} offen\nL_{label}_P:')
    e(f'buffer_load_dwordx4 {vr(U,4)}, v{vUa}, {sr(srdWS,4)}, s{sUo} offen')
    e(f's_add_u32 s{sWp}, s{sWSp}, {hex(WS_WIN)}\ns_addc_u32 s{sWp+1}, s{sWSp+1}, 0\ns_load_dwordx8 {sr(sWin,8)}, {sr(sWp,2)}, 0')
    b.stamp(1)
    srd(b, srdO, sO, 0x200000)
    vOa = b.v(); vYr = b.v(); vYw = b.v(); vRow = b.v(); vFx = b.v()
    e(f'v_and_b32 v{vT}, 255, v0\nv_lshl_add_u32 v{vT2}, v{vT}, 3, s{sT1}')
    e(f'v_sub_u32 v{vT3}, 0x800, v{vT2}\nv_and_b32 v{vT3}, 0x7ff, v{vT3}')
    e(f's_lshl_b32 s{sT}, s{sG}, 4\ns_sub_u32 s{sT2}, 1008, s{sT}\ns_cmp_lt_u32 s{sW}, 4\ns_cselect_b32 s{sT}, s{sT}, s{sT2}')
    e(f's_cselect_b64 vcc, -1, 0')
    e(f'v_cndmask_b32 v{vRow}, v{vT3}, v{vT2}, vcc\nv_lshl_add_u32 v{vOa}, v{vRow}, 10, s{sT}')
    e(f'v_bfe_u32 v{vT2}, v{vT}, 5, 2\nv_lshlrev_b32 v{vT2}, 4, v{vT2}\nv_lshlrev_b32 v{vT}, 2, v{vT}\nv_xor_b32 v{vYr}, v{vT}, v{vT2}')
    e(f's_mov_b32 s{sLo}, 0x00003f80\ns_mov_b32 s{sHi}, 0x3f800000')
    e(f's_cmp_gt_u32 s{sW}, 4\ns_cbranch_scc1 L_{label}_aux')
    e(f'v_bfe_u32 v{vT}, v{vN}, 1, 2\nv_xor_b32 v{vT}, v{vT}, v{vQ}\nv_lshlrev_b32 v{vT}, 4, v{vT}\nv_lshl_add_u32 v{vT}, v{vN}, 6, v{vT}')
    e(f's_lshl_b32 s{sT}, s{sW}, 11\nv_add_u32 v{vYw}, s{sT}, v{vT}')
    mark = set(b.used); marksz = dict(b.sz)
    vNf = b.v(); vQ4 = b.v(); ang = b.v(4); co = b.v(4, 2); si = b.v(4, 2)
    Br = b.v(4, 4); Bi = b.v(4, 4); B2 = b.v(4, 4); TC = b.v(4, 2); TS = b.v(4, 2)
    e(f'v_cvt_f32_u32 v{vNf}, v{vN}\nv_lshlrev_b32 v{vT}, 2, v{vQ}\nv_cvt_f32_u32 v{vQ4}, v{vT}')
    e(f'v_mul_f32 v{vT}, {fl(1/16)}, v{vNf}\nv_mul_f32 v{ang}, v{vT}, v{vQ4}')
    for r in range(1, 4): e(f'v_fmamk_f32 v{ang+r}, v{vT}, {fl(float(r))}, v{ang}')
    for r in range(4): e(f'v_cos_f32 v{co+r}, v{ang+r}\nv_sin_f32 v{si+r}, v{ang+r}')
    pi = (0, 2, 1, 3)
    for i in range(4):
        e(f'v_cvt_pk_f16_f32 v{Br+i}, v{co+pi[i]}, v{si+pi[i]}\nv_cvt_pk_f16_f32 v{Bi+i}, -v{si+pi[i]}, v{co+pi[i]}')
    for r in range(4): e(f'v_mul_f32 v{co+r}, 4.0, v{co+r}\nv_mul_f32 v{si+r}, 4.0, v{si+r}\nv_mul_f32 v{ang+r}, {fl(1/16)}, v{ang+r}')
    e(f'v_cvt_pk_f16_f32 v{B2}, v{co}, v{co+1}\nv_cvt_pk_f16_f32 v{B2+1}, v{co+2}, v{co+3}')
    e(f'v_cvt_pk_f16_f32 v{B2+2}, v{si}, v{si+1}\nv_cvt_pk_f16_f32 v{B2+3}, v{si+2}, v{si+3}')
    for r in range(4): e(f'v_cos_f32 v{TC+r}, v{ang+r}\nv_sin_f32 v{TS+r}, v{ang+r}')
    for r in range(4): e(f'v_mul_f32 v{TC+r}, {fl(0.25)}, v{TC+r}\nv_mul_f32 v{TS+r}, {fl(0.25)}, v{TS+r}')
    def match():
        e(f's_waitcnt lgkmcnt(0)\nv_not_b32 v{vT}, v{vRow}\nv_and_b32 v{vT}, 0x7ff, v{vT}\nv_mov_b32 v{vFx}, {FZERO}')
        e(f's_lshr_b32 s{sT2}, s{sW}, 2\ns_lshl_b32 s{sT2}, s{sT2}, 8\ns_add_u32 s{sT2}, s{sT2}, {FIX}')
        for k in range(8):
            e(f's_and_b32 s{sT}, s{sWin+k}, 0x7ff\nv_cmp_ne_u32 vcc, s{sT}, v{vT}\ns_add_u32 s{sT}, s{sT2}, {32*k}\nv_mov_b32 v{vT2}, s{sT}\nv_cndmask_b32 v{vFx}, v{vT2}, v{vFx}, vcc')
    match()
    Dr = [b.v(4, 4), b.v(4, 4)]; Di = [b.v(4, 4), b.v(4, 4)]; OB = [b.v(4, 4), b.v(4, 4)]; TR = b.v(4, 2); TI = b.v(4, 2); D2 = [b.v(4, 4), b.v(4, 4)]
    b.stamp(2)
    e('s_waitcnt vmcnt(1)')
    b.stamp(3)
    e(f'v_swap_b32 v{P+1}, v{P+4}\nv_swap_b32 v{P+3}, v{P+6}')
    for c in range(2):
        e(f'v_mfma_f32_16x16x32_f16 {vr(Dr[c],4)}, {vr(P+4*c,4)}, {vr(Br,4)}, 0')
        e(f'v_mfma_f32_16x16x32_f16 {vr(Di[c],4)}, {vr(P+4*c,4)}, {vr(Bi,4)}, 0')
    for c in range(2):
        twiddle_pack(b, Dr[c], Di[c], TC, TS, TR, TI, OB[c])
        e(f'v_mfma_f32_16x16x32_f16 {vr(D2[c],4)}, {vr(OB[c],4)}, {vr(B2,4)}, 0')
    for c in range(2): e(f'ds_write_b128 v{vYw}, {vr(D2[c],4)} offset:{1024*c}')
    e(f's_branch L_{label}_bar')
    b.used = set(mark); b.sz = dict(marksz)
    e(f'L_{label}_aux:\ns_cmp_eq_u32 s{sW}, 7\ns_cbranch_scc1 L_{label}_w7')
    PP = b.v(56, 4); vA = b.v(); vRs = b.v(2, 2); sMk = b.s(2)
    e(f'v_and_b32 v{vT3}, 7, v{vL}\nv_lshlrev_b32 v{vA}, 14, v{vT3}\nv_lshl_add_u32 v{vA}, v{vKa}, 9, v{vA}')
    e(f's_lshl_b32 s{sT}, s{sG}, 5\ns_sub_u32 s{sT2}, 2016, s{sT}\ns_cmp_eq_u32 s{sW}, 5\ns_cselect_b32 s{sT}, s{sT}, s{sT2}\ns_cselect_b32 s{sT2}, 7, 0\ns_cselect_b32 s{sPo}, 0, 1')
    e(f's_add_u32 s{sT}, s{sT}, {hex(WS_PART)}')
    e(f's_waitcnt vmcnt(1)\nv_xor_b32 v{vT}, s{sT2}, v{vK}\nv_add_u32 v{vT}, s{sPo}, v{vT}\nv_and_b32 v{vT}, 7, v{vT}\nv_cmp_eq_u32 {sr(sMk,2)}, s{sT1}, v{vT}')
    e(f's_mov_b64 exec, {sr(sMk,2)}\ns_cbranch_execz L_{label}_nomoe')
    for i in range(7):
        e(f'buffer_load_dwordx4 {vr(PP+8*i,4)}, v{vA}, {sr(srdWS,4)}, s{sT} offen\nbuffer_load_dwordx4 {vr(PP+8*i+4,4)}, v{vA}, {sr(srdWS,4)}, s{sT} offen offset:16')
        if i < 6: e(f's_add_u32 s{sT}, s{sT}, {8*16384}')
    e(f'v_ashrrev_i32 v{vT}, 31, v{vK}\nv_not_b32 v{vT}, v{vT}\nv_or_b32 v{vT}, 0x80000000, v{vT}\nv_xor_b32 v{vT}, v{vT}, v{vK}\nv_and_b32 v{vT}, 0xffff0000, v{vT}')
    e(f'v_mul_f32 v{vT}, {fl(-LOG2E)}, v{vT}\nv_exp_f32 v{vT}, v{vT}\nv_add_f32 v{vT}, 1.0, v{vT}\nv_rcp_f32 v{vRs}, v{vT}')
    bf16r(b, vRs)
    e(f's_sub_u32 s{sT2}, s{sW}, 5\ns_lshl_b32 s{sT2}, s{sT2}, 8\ns_add_u32 s{sT2}, s{sT2}, {FIX}\nv_lshl_add_u32 v{vA}, v{vKa}, 3, s{sT2}')
    for i in range(1, 7):
        e(f's_waitcnt vmcnt({12-2*i})')
        for p in range(4): e(f'v_pk_add_f32 {vr(PP+2*p,2)}, {vr(PP+2*p,2)}, {vr(PP+8*i+2*p,2)}')
    for ctl in ('quad_perm:[1,0,3,2]', 'quad_perm:[2,3,0,1]', 'row_half_mirror'):
        for r in range(8): e(f'v_add_f32_dpp v{PP+r}, v{PP+r}, v{PP+r} {ctl} row_mask:0xf bank_mask:0xf')
    bf16r(b, PP, 8)
    for p in range(4): e(f'v_pk_mul_f32 {vr(PP+2*p,2)}, {vr(PP+2*p,2)}, {vr(vRs,2)} op_sel_hi:[1,0]')
    e(f's_and_b32 exec_lo, exec_lo, 0x01010101\ns_and_b32 exec_hi, exec_hi, 0x01010101')
    e(f'ds_write_b128 v{vA}, {vr(PP,4)}\nds_write_b128 v{vA}, {vr(PP+4,4)} offset:16')
    e(f'L_{label}_nomoe:\ns_mov_b64 exec, -1\ns_branch L_{label}_m2')
    e(f'L_{label}_w7:\nv_mov_b32 v{vT}, 0\nv_lshlrev_b32 v{vT2}, 2, v{vT3}'.replace(f'v{vT3}', f'v{vL}') + f'\ns_mov_b64 exec, 0xff\nds_write_b32 v{vT2}, v{vT} offset:{FZERO}\ns_mov_b64 exec, -1')
    e(f'L_{label}_m2:')
    match()
    e(f'L_{label}_bar:\ns_waitcnt lgkmcnt(0)')
    b.stamp(4)
    e('s_barrier')
    b.stamp(5)
    b.used = set(mark); b.sz = dict(marksz)
    Y = b.v(8, 2); O = b.v(4, 4); F = b.v(8, 4)
    e(f's_cmp_lt_u32 s{sW}, 4\ns_cbranch_scc0 L_{label}_mir')
    for j in range(8): e(f'ds_read_b32 v{Y+j}, v{vYr} offset:{1024*j}')
    e(f's_branch L_{label}_fin\nL_{label}_mir:')
    for j in range(8): e(f'ds_read_b32 v{Y+j}, v{vYr} offset:{1024*(8-j)}')
    e(f'L_{label}_fin:\nds_read_b128 {vr(F,4)}, v{vFx}\nds_read_b128 {vr(F+4,4)}, v{vFx} offset:16\ns_waitcnt vmcnt(0) lgkmcnt(2)')
    for i in range(4):
        e(f'v_dot2_f32_bf16 v{Y+2*i}, v{U+i}, s{sLo}, v{Y+2*i}\nv_dot2_f32_bf16 v{Y+2*i+1}, v{U+i}, s{sHi}, v{Y+2*i+1}')
    e('s_waitcnt lgkmcnt(0)')
    for i in range(4): e(f'v_pk_add_f32 {vr(Y+2*i,2)}, {vr(Y+2*i,2)}, {vr(F+2*i,2)}')
    for i in range(4): e(f'v_cvt_pk_bf16_f32 v{O+i}, v{Y+2*i}, v{Y+2*i+1}')
    e(f'buffer_store_dwordx4 {vr(O,4)}, v{vOa}, {sr(srdO,4)}, 0 offen {opt.get("sc_o","")}')
    b.stamp(6)
    b.stamp_out(srdWS, WS_ST[1])
    e('s_endpgm')
```

```python
from p_common import *
MX = 65536; CAND = MX + 64; SEL = CAND + 256
MOE_LDS = SEL + 256

def moe_body(b, label, opt):
    e = b.e
    sX = b.s(2); sGp = b.s(4, 4); sDp = b.s(2); sDbg = b.s(4, 4); sWSp = sDbg + 2
    srdW = b.s(4); srdD = b.s(4); srdWS = b.s(4); srdX = b.s(4); srdG = b.s(4)
    sW = b.s(); sJ = b.s(); sT = b.s(); sT2 = b.s(); sKq = b.s(); sWh = b.s(); sTag = b.s(); sCnt = b.s()
    b.stamp_init()
    e(f's_load_dwordx4 {sr(sDbg,4)}, s[0:1], 88\ns_load_dwordx4 {sr(sGp,4)}, s[0:1], 56\ns_load_dwordx2 {sr(sDp,2)}, s[0:1], 72\ns_load_dwordx2 {sr(sX,2)}, s[0:1], 0')
    vL = b.v(); vN = b.v(); vQ = b.v(); vT = b.v(); vT2 = b.v(); vKa = b.v(); vWa = b.v(); vDa = b.v(); vZ = b.v(); vE = b.v()
    e(f'v_lshrrev_b32 v{vT}, 6, v0\nv_and_b32 v{vL}, 63, v0')
    e(f'v_readfirstlane_b32 s{sW}, v{vT}')
    e(f's_sub_u32 s{sT}, s2, 256\ns_and_b32 s{sJ}, s{sT}, 7\ns_mul_i32 s{sJ}, s{sJ}, 7\ns_lshr_b32 s{sT}, s{sT}, 3\ns_add_u32 s{sJ}, s{sJ}, s{sT}')
    e(f'v_and_b32 v{vN}, 15, v{vL}\nv_lshrrev_b32 v{vQ}, 4, v{vL}\nv_mov_b32 v{vZ}, 0')
    e(f's_and_b32 s{sKq}, s{sW}, 3\ns_lshr_b32 s{sWh}, s{sW}, 2')
    e(f'v_lshrrev_b32 v{vT}, 1, v0\nv_lshlrev_b32 v{vT}, 7, v{vT}\nv_and_b32 v{vT2}, 1, v0\nv_lshl_add_u32 v{vKa}, v{vT2}, 5, v{vT}')
    e(f'v_lshrrev_b32 v{vT}, 2, v{vL}\nv_mul_u32_u24 v{vT}, 3584, v{vT}\nv_and_b32 v{vT2}, 3, v{vL}\nv_lshl_add_u32 v{vWa}, v{vT2}, 4, v{vT}')
    e(f'v_lshrrev_b32 v{vT}, 3, v{vL}\nv_lshlrev_b32 v{vT}, 10, v{vT}\nv_and_b32 v{vT2}, 7, v{vL}\nv_lshl_add_u32 v{vDa}, v{vT2}, 4, v{vT}')
    e('s_waitcnt lgkmcnt(0)')
    srd(b, srdWS, sWSp, WS_SIZE)
    e(f's_mov_b32 s{sT}, {hex(WS_E)}\nbuffer_load_dword v{vE}, v{vZ}, {sr(srdWS,4)}, s{sT} offen sc1')
    e(f's_cmp_eq_u32 s{sWh}, 0\ns_cselect_b32 s{srdW}, s{sGp}, s{sGp+2}\ns_cselect_b32 s{srdW+1}, s{sGp+1}, s{sGp+3}')
    e(f's_mov_b32 s{srdW+2}, {512*3584}\ns_mov_b32 s{srdW+3}, 0x20000')
    srd(b, srdD, sDp, 1792 * 1024)
    srd(b, srdG, sDbg, 256)
    srd(b, srdX, sX, 0x200000)
    vDb = b.v()
    e(f's_waitcnt vmcnt(0)\nbuffer_load_dword v{vDb}, v{vZ}, {sr(srdG,4)}, 0 offen sc1')
    e(f's_mul_i32 s{sT}, s{sKq}, {128*3584}\ns_lshl_b32 s{sT2}, s{sJ}, 6\ns_add_u32 s{sT}, s{sT}, s{sT2}')
    e(f's_lshl_b32 s{sT2}, s{sW}, 13\ns_mov_b32 m0, s{sT2}')
    for i in range(8):
        if i == 4: e(f's_add_u32 s{sT2}, s{sT2}, 4096\ns_mov_b32 m0, s{sT2}\ns_add_u32 s{sT}, s{sT}, 4096')
        e(f'buffer_load_dwordx4 v{vWa}, {sr(srdW,4)}, s{sT} offen offset:{1024*(i&3)} lds')
        if i < 7: e(f's_add_u32 s{sT}, s{sT}, {16*3584 - 1024}')
    WD = b.v(16, 4)
    e(f's_lshl_b32 s{sT}, s{sJ}, 15\ns_lshl_b32 s{sT2}, s{sW}, 7\ns_add_u32 s{sT}, s{sT}, s{sT2}')
    for i in range(4):
        e(f'buffer_load_dwordx4 {vr(WD+4*i,4)}, v{vDa}, {sr(srdD,4)}, s{sT} offen')
        if i < 3: e(f's_add_u32 s{sT}, s{sT}, 8192')
    b.free(vWa, vDa)
    e(f's_waitcnt vmcnt(12)\nv_readfirstlane_b32 s{sTag}, v{vE}\nv_readfirstlane_b32 s{sT}, v{vDb}')
    e(f's_add_u32 s{sTag}, s{sTag}, 1\ns_cselect_b32 s{sTag}, 1, s{sTag}\ns_cmp_eq_u32 s{sT}, 0\ns_cselect_b32 s{sTag}, s{sTag}, s{sT}')
    b.free(vE, vDb)
    vCw = b.v(); vL4 = b.v()
    e(f'v_lshlrev_b32 v{vL4}, 2, v{vL}\ns_lshl_b32 s{sT}, s{sW}, 5\ns_add_u32 s{sT}, s{sT}, {CAND}\nv_add_u32 v{vCw}, s{sT}, v{vL4}')
    e(f's_mov_b64 exec, 0xff\nds_write_b32 v{vCw}, v{vZ}\ns_mov_b64 exec, -1')
    b.stamp(1)
    WA = b.v(32, 4); vR = b.v(); vR2 = b.v()
    e(f'v_lshlrev_b32 v{vT}, 9, v{vQ}\nv_bfe_u32 v{vT2}, v{vL}, 2, 2\nv_lshl_add_u32 v{vT}, v{vT2}, 6, v{vT}\nv_and_b32 v{vT2}, 3, v{vL}\nv_lshl_add_u32 v{vT}, v{vT2}, 3, v{vT}')
    e(f's_lshl_b32 s{sT}, s{sW}, 13\nv_add_u32 v{vR}, s{sT}, v{vT}')
    e(f'v_lshrrev_b32 v{vT}, 2, v{vL}\nv_lshlrev_b32 v{vT}, 7, v{vT}\nv_lshl_add_u32 v{vT}, v{vT2}, 3, v{vT}\nv_add_u32 v{vR2}, s{sT}, v{vT}')
    vPw = b.v()
    e(f'v_lshl_add_u32 v{vPw}, v{vL}, 4, s{sT}')
    e('s_waitcnt vmcnt(4)')
    for ks in range(4):
        for T in range(2):
            for t in range(2):
                e(f'ds_read_b64_tr_b16 {vr(WA+8*ks+4*T+2*t,2)}, v{vR} offset:{ks*2048+t*256+T*32}')
    e('s_waitcnt vmcnt(0) lgkmcnt(0)')
    for i in range(4): e(f'ds_write_b128 v{vPw}, {vr(WD+4*i,4)} offset:{1024*i}')
    ON = b.v(4, 4); CS = b.v(8, 4)
    for i in range(4): e(f'v_mov_b32 v{ON+i}, 0x3f803f80')
    e('s_waitcnt lgkmcnt(0)')
    for T in range(4):
        for t in range(2): e(f'ds_read_b64_tr_b16 {vr(WD+4*T+2*t,2)}, v{vR2} offset:{t*2048+T*32}')
    for ks in range(4):
        for T in range(2):
            e(f'v_mfma_f32_16x16x32_bf16 {vr(CS+4*T,4)}, {vr(WA+8*ks+4*T,4)}, {vr(ON,4)}, {"0" if ks == 0 else vr(CS+4*T,4)}')
    b.free(vR, vR2, ON)
    b.stamp(2)
    K = b.v(8, 4); vM = b.v()
    e(f's_mov_b32 s{sT}, {hex(WS_KEY)}\ns_mov_b32 s{sCnt}, 0\nL_{label}_poll:')
    e(f'buffer_load_dwordx4 {vr(K,4)}, v{vKa}, {sr(srdWS,4)}, s{sT} offen sc1\nbuffer_load_dwordx4 {vr(K+4,4)}, v{vKa}, {sr(srdWS,4)}, s{sT} offen offset:16 sc1')
    e(f's_add_u32 s{sCnt}, s{sCnt}, 1\ns_cmp_gt_u32 s{sCnt}, 0x40000\ns_cbranch_scc1 L_{label}_got\ns_waitcnt vmcnt(0)')
    e(f'v_xor_b32 v{K+1}, s{sTag}, v{K+1}\nv_xor_b32 v{K+3}, s{sTag}, v{K+3}\nv_xor_b32 v{K+5}, s{sTag}, v{K+5}\nv_xor_b32 v{K+7}, s{sTag}, v{K+7}')
    e(f'v_or3_b32 v{vM}, v{K+1}, v{K+3}, v{K+5}\nv_or_b32 v{vM}, v{vM}, v{K+7}\nv_cmp_ne_u32 vcc, 0, v{vM}\ns_cbranch_vccnz L_{label}_poll')
    e(f'L_{label}_got:\ns_waitcnt vmcnt(0) lgkmcnt(0)')
    b.stamp(3)
    Ks = [K, K+2, K+4, K+6]
    e(f'v_max3_u32 v{vM}, v{K}, v{K+2}, v{K+4}\nv_max_u32 v{vM}, v{vM}, v{K+6}')
    multi_red(b, 'v_max_u32', (vM,))
    e(f's_lshl_b32 s{sT}, s{sW}, 2\ns_add_u32 s{sT}, s{sT}, {MX}\nv_mov_b32 v{vT}, s{sT}\nv_mov_b32 v{vT2}, {MX}')
    e(f's_mov_b32 exec_lo, 0\ns_mov_b32 exec_hi, 0x80000000\nds_write_b32 v{vT}, v{vM}\ns_mov_b64 exec, -1\ns_waitcnt lgkmcnt(0)\ns_barrier')
    M8 = b.v(8, 4)
    e(f'ds_read_b128 {vr(M8,4)}, v{vT2}\nds_read_b128 {vr(M8+4,4)}, v{vT2} offset:16')
    e(f's_or_b32 s{sT}, s{sJ}, s{sW}\ns_cmp_lg_u32 s{sT}, 0\ns_cbranch_scc1 L_{label}_nodbg')
    e(f'v_mov_b32 v{K+1}, s{sTag}\ns_mov_b64 exec, 1\nbuffer_store_dword v{K+1}, v{vZ}, {sr(srdG,4)}, 0 offen sc1\ns_mov_b64 exec, -1\nL_{label}_nodbg:')
    e(f's_waitcnt lgkmcnt(0)\nv_min3_u32 v{M8}, v{M8}, v{M8+1}, v{M8+2}\nv_min3_u32 v{M8+3}, v{M8+3}, v{M8+4}, v{M8+5}')
    e(f'v_min3_u32 v{M8}, v{M8}, v{M8+6}, v{M8+7}\nv_min_u32 v{M8}, v{M8}, v{M8+3}')
    sM = [b.s(2) for _ in range(4)]; sC = [b.s() for _ in range(4)]
    for i in range(4): e(f'v_cmp_ge_u32 {sr(sM[i],2)}, v{Ks[i]}, v{M8}')
    for i in range(4): e(f's_bcnt1_i32_b64 s{sC[i]}, {sr(sM[i],2)}')
    e(f's_add_u32 s{sC[1]}, s{sC[1]}, s{sC[0]}\ns_add_u32 s{sC[2]}, s{sC[2]}, s{sC[1]}\ns_add_u32 s{sC[3]}, s{sC[3]}, s{sC[2]}')
    e(f's_cmp_gt_u32 s{sC[3]}, 8\ns_cbranch_scc1 L_{label}_many')
    e(f's_lshl_b32 s{sT}, s{sW}, 5\ns_add_u32 s{sT}, s{sT}, {CAND}')
    for i in range(4):
        e(f'v_mbcnt_lo_u32_b32 v{M8+1+i}, s{sM[i]}, ' + ('0' if i == 0 else f'v{M8+5}'))
        e(f'v_mbcnt_hi_u32_b32 v{M8+1+i}, s{sM[i]+1}, v{M8+1+i}')
        if i < 3: e(f'v_mov_b32 v{M8+5}, s{sC[i]}')
    for i in range(4): e(f'v_lshl_add_u32 v{M8+1+i}, v{M8+1+i}, 2, s{sT}')
    for i in range(4): e(f's_mov_b64 exec, {sr(sM[i],2)}\nds_write_b32 v{M8+1+i}, v{Ks[i]}')
    e(f's_mov_b64 exec, -1\nL_{label}_cand:\ns_waitcnt lgkmcnt(0)\ns_barrier')
    vC = M8
    e(f'v_add_u32 v{vT}, {CAND}, v{vL4}\nds_read_b32 v{vC}, v{vT}')
    sRem = sM[0]; sGe = sM[1]; sP = sC[0]; sPv = sC[1]
    e(f's_lshl_b32 s{sT}, s{sW}, 5\ns_add_u32 s{sT}, s{sT}, {SEL}\nv_and_b32 v{vT2}, 7, v{vL}\nv_lshl_add_u32 v{vT2}, v{vT2}, 2, s{sT}')
    e(f's_waitcnt lgkmcnt(0)\nv_cmp_ne_u32 {sr(sRem,2)}, 0, v{vC}\ns_nop 0')
    e(f'L_{label}_qs:\ns_ff1_i32_b64 s{sP}, {sr(sRem,2)}\nv_readlane_b32 s{sPv}, v{vC}, s{sP}\ns_bitset0_b64 {sr(sRem,2)}, s{sP}\ns_nop 0')
    e(f'v_cmp_le_u32 vcc, s{sPv}, v{vC}\ns_bcnt1_i32_b64 s{sP}, vcc\ns_cmp_eq_u32 s{sP}, 8\ns_cbranch_scc1 L_{label}_qd')
    e(f's_cmp_gt_u32 s{sP}, 8\ns_cselect_b64 {sr(sGe,2)}, 0, -1\ns_xor_b64 {sr(sGe,2)}, {sr(sGe,2)}, vcc\ns_and_b64 {sr(sRem,2)}, {sr(sRem,2)}, {sr(sGe,2)}\ns_cbranch_scc1 L_{label}_qs')
    e(f'L_{label}_qd:\nv_mbcnt_lo_u32_b32 v{vT}, vcc_lo, 0\nv_mbcnt_hi_u32_b32 v{vT}, vcc_hi, v{vT}\nv_min_u32 v{vT}, 7, v{vT}\nv_lshl_add_u32 v{vT}, v{vT}, 2, s{sT}')
    vKey = b.v()
    e(f's_mov_b64 exec, vcc\nds_write_b32 v{vT}, v{vC}\ns_mov_b64 exec, -1\nds_read_b32 v{vKey}, v{vT2}')
    b.free(M8, K, vM, vCw)
    XB = b.v(16, 4); vXa = b.v(); ST = b.v(2, 2); vSa = b.v()
    e(f's_lshl_b32 s{sT}, s{sKq}, 8\ns_mov_b32 s{sT2}, {hex(WS_KEY+64)}\ns_waitcnt lgkmcnt(0)')
    b.stamp(4)
    e(f'v_not_b32 v{vT}, v{vKey}\nv_and_b32 v{vT}, 0x7ff, v{vT}\nv_lshlrev_b32 v{vXa}, 10, v{vT}\nv_lshl_add_u32 v{vXa}, v{vQ}, 4, v{vXa}')
    for i in range(4): e(f'buffer_load_dwordx4 {vr(XB+4*i,4)}, v{vXa}, {sr(srdX,4)}, s{sT} offen offset:{64*i}')
    e(f'v_and_b32 v{vT2}, 255, v{vT}\nv_lshlrev_b32 v{vT2}, 7, v{vT2}\nv_lshrrev_b32 v{vT}, 8, v{vT}\nv_lshl_add_u32 v{vSa}, v{vT}, 3, v{vT2}')
    e(f'buffer_load_dwordx2 {vr(ST,2)}, v{vSa}, {sr(srdWS,4)}, s{sT2} offen sc1')
    G = b.v(8, 4); vPr = b.v()
    e(f'v_lshrrev_b32 v{vT}, 3, v{vN}\nv_lshlrev_b32 v{vT}, 10, v{vT}\nv_and_b32 v{vT2}, 0x37, v{vL}\nv_lshl_add_u32 v{vPr}, v{vT2}, 4, v{vT}')
    for ks in range(4):
        e(f's_waitcnt vmcnt({4-ks})')
        for T in range(2):
            e(f'v_mfma_f32_16x16x32_bf16 {vr(G+4*T,4)}, {vr(WA+8*ks+4*T,4)}, {vr(XB+4*ks,4)}, {"0" if ks == 0 else vr(G+4*T,4)}')
    e(f's_mov_b32 s{sCnt}, 0\nL_{label}_stw:\ns_waitcnt vmcnt(0)\nv_cmp_ne_u32 vcc, s{sTag}, v{ST+1}\ns_cbranch_vccz L_{label}_std')
    e(f's_add_u32 s{sCnt}, s{sCnt}, 1\ns_cmp_gt_u32 s{sCnt}, 0x40000\ns_cbranch_scc1 L_{label}_std')
    e(f'buffer_load_dwordx2 {vr(ST,2)}, v{vSa}, {sr(srdWS,4)}, s{sT2} offen sc1\ns_branch L_{label}_stw\nL_{label}_std:')
    vMb = b.v(2, 2); vRc = b.v(2, 2)
    e(f'v_and_b32 v{vMb}, 0xffff0000, v{ST}\nv_lshlrev_b32 v{vRc}, 16, v{ST}\nv_rcp_f32 v{vRc}, v{vRc}')
    for p in range(4): e(f'v_pk_fma_f32 {vr(G+2*p,2)}, {vr(CS+2*p,2)}, {vr(vMb,2)}, {vr(G+2*p,2)} op_sel_hi:[1,0,1] neg_lo:[0,1,0] neg_hi:[0,1,0]')
    e(f'ds_write_b128 v{vPw}, {vr(G,4)}\nds_write_b128 v{vPw}, {vr(G+4,4)} offset:1024\ns_waitcnt lgkmcnt(0)\ns_barrier')
    b.stamp(5)
    b.free(WA, XB, G, CS)
    PR = b.v(32, 4)
    for i in range(8): e(f'ds_read_b128 {vr(PR+4*i,4)}, v{vPr} offset:{8192*i}')
    for wh in range(2):
        o = PR + 16*wh
        e(f's_waitcnt lgkmcnt({4 - 4*wh})')
        for p in range(2):
            e(f'v_pk_add_f32 {vr(o+2*p,2)}, {vr(o+2*p,2)}, {vr(o+4+2*p,2)}\nv_pk_add_f32 {vr(o+8+2*p,2)}, {vr(o+8+2*p,2)}, {vr(o+12+2*p,2)}')
        for p in range(2): e(f'v_pk_add_f32 {vr(o+2*p,2)}, {vr(o+2*p,2)}, {vr(o+8+2*p,2)}')
        for p in range(2): e(f'v_pk_mul_f32 {vr(o+2*p,2)}, {vr(o+2*p,2)}, {vr(vRc,2)} op_sel_hi:[1,0]')
        bf16r(b, o, 4)
    Gv = PR; Uv = PR + 16; S = PR + 4
    for r in range(4): e(f'v_mul_f32 v{S+r}, {fl(-LOG2E)}, v{Gv+r}')
    for r in range(4): e(f'v_exp_f32 v{S+r}, v{S+r}')
    for r in range(4): e(f'v_add_f32 v{S+r}, 1.0, v{S+r}')
    for r in range(4): e(f'v_rcp_f32 v{S+r}, v{S+r}')
    for r in range(4): e(f'v_mul_f32 v{S+r}, v{S+r}, v{Gv+r}')
    bf16r(b, S, 4)
    for r in range(4): e(f'v_mul_f32 v{S+r}, v{S+r}, v{Uv+r}')
    H = PR + 8
    e(f'v_cvt_pk_bf16_f32 v{H}, v{S}, v{S+1}\nv_cvt_pk_bf16_f32 v{H+1}, v{S+2}, v{S+3}')
    for i in range(2): e(f'v_mov_b32_dpp v{H+2+i}, v{H+i} row_ror:8 row_mask:0xf bank_mask:0xf')
    DD = b.v(16, 4); vOa = b.v()
    for T in range(4): e(f'v_mfma_f32_16x16x32_bf16 {vr(DD+4*T,4)}, {vr(WD+4*T,4)}, {vr(H,4)}, 0')
    e(f'v_lshlrev_b32 v{vT}, 11, v{vN}\nv_lshl_add_u32 v{vOa}, v{vQ}, 4, v{vT}')
    e(f's_lshl_b32 s{sT}, s{sJ}, 14\ns_lshl_b32 s{sT2}, s{sW}, 8\ns_add_u32 s{sT}, s{sT}, s{sT2}\ns_add_u32 s{sT}, s{sT}, {hex(WS_PART)}')
    e('s_mov_b32 exec_lo, 0x00ff00ff\ns_mov_b32 exec_hi, 0x00ff00ff')
    for T in range(4): e(f'buffer_store_dwordx4 {vr(DD+4*T,4)}, v{vOa}, {sr(srdWS,4)}, s{sT} offen offset:{64*T} {opt.get("sc_p","")}')
    e(f's_or_b32 s{sT}, s{sJ}, s{sW}\ns_cmp_lg_u32 s{sT}, 0\ns_cbranch_scc1 L_{label}_fin')
    e(f's_mov_b64 exec, 0xff\ns_mov_b32 s{sT}, {hex(WS_WIN)}\nbuffer_store_dword v{vKey}, v{vL4}, {sr(srdWS,4)}, s{sT} offen')
    e(f's_mov_b64 exec, 1\nv_mov_b32 v{vT}, s{sTag}\ns_mov_b32 s{sT}, {hex(WS_E)}\nbuffer_store_dword v{vT}, v{vZ}, {sr(srdWS,4)}, s{sT} offen sc1')
    e(f'L_{label}_fin:')
    b.stamp(6)
    b.stamp_out(srdWS, WS_ST[0])
    e('s_endpgm')
    sWin = sC[0]; sI = sC[1]
    e(f'L_{label}_many:\ns_mov_b32 s{sWin}, 0\ns_mov_b32 s{sI}, 0\nL_{label}_mloop:')
    for i in range(4): e(f'v_subrev_u32 v{M8+1+i}, s{sWin}, v{Ks[i]}')
    e(f'v_max3_u32 v{vM}, v{M8+1}, v{M8+2}, v{M8+3}\nv_max_u32 v{vM}, v{vM}, v{M8+4}')
    multi_red(b, 'v_max_u32', (vM,))
    e(f'v_readlane_b32 s{sT}, v{vM}, 63\ns_add_u32 s{sWin}, s{sWin}, s{sT}\ns_mov_b32 m0, s{sI}\ns_nop 0\nv_writelane_b32 v{M8+5}, s{sWin}, m0')
    e(f's_add_u32 s{sI}, s{sI}, 1\ns_cmp_lt_u32 s{sI}, 8\ns_cbranch_scc1 L_{label}_mloop')
    e(f's_mov_b64 exec, 0xff\nds_write_b32 v{vCw}, v{M8+5}\ns_mov_b64 exec, -1\ns_branch L_{label}_cand')
```

```python
import sys
from p_common import *
from p_fft1 import *
from p_moe import *
from p_fft2 import *
def build(out, opt, stamps=False):
    B.STAMPS = stamps
    k1 = B()
    k1.e('s_cmp_ge_u32 s2, 256\ns_cbranch_scc1 L_k1_moe')
    fft1_body(k1, 'f1', opt)
    k1.reset()
    k1.e(f'L_k1_moe:\ns_cmp_ge_u32 s2, {256+NMOE}\ns_cbranch_scc0 L_k1_moe2\ns_endpgm\nL_k1_moe2:')
    moe_body(k1, 'moe', opt)
    k2 = B()
    k2.e('s_cmp_ge_u32 s2, 256\ns_cbranch_scc0 L_k2_go\ns_endpgm\nL_k2_go:')
    fft2_body(k2, 'f2', opt)
    ls = [('k1_kernel', 256 + NMOE, 512, max(FFT1_LDS, MOE_LDS)), ('k2_kernel', 256, 512, FFT2_LDS)]
    s = header(ls)
    for (l, _, _, _), k in zip(ls, (k1, k2)): s += kernel(l, k.text())
    s += rodata([descriptor(l[0], max(k.maxv, 8)) for l, k in zip(ls, (k1, k2))])
    open(out, 'w').write(s)
    print(out, 'vgprs', k1.maxv, k2.maxv, 'lines', s.count('\n'))
if __name__ == '__main__':
    opt = eval(sys.argv[2]) if len(sys.argv) > 2 else {}
    build(sys.argv[1], opt, len(sys.argv) > 3)
```

```python
import sys, re
from build_p import *
def diag(out, opt, region, wg0, step, wave, idx, red, builder=build, nlanes=64):
    builder(out, opt, True)
    L = open(out).read().split('\n')
    i = max(j for j, l in enumerate(L) if 'buffer_store_dwordx4 v[8:11]' in l)
    ws = L[i].split(',')[2].strip()
    op = 'v_max_u32' if red == 'max' else 'v_min_u32'
    def dpp(op, v):
        return ''.join(f's_nop 1\n{op}_dpp v{v}, v{v}, v{v} {c} bank_mask:0xf\n' for c in ('row_ror:8 row_mask:0xf', 'row_ror:4 row_mask:0xf', 'row_ror:2 row_mask:0xf', 'row_ror:1 row_mask:0xf', 'row_bcast:15 row_mask:0xa', 'row_bcast:31 row_mask:0xc'))
    extra = f"""
s_cmp_lg_u32 s2, 0
s_cbranch_scc1 L_diag_end
v_readfirstlane_b32 s70, v12
s_cmp_lg_u32 s70, 0
s_cbranch_scc1 L_diag_end
s_mov_b64 exec, -1
s_waitcnt vmcnt(0)
v_and_b32 v13, 63, v0
v_min_u32 v16, {nlanes-1}, v13
v_mul_u32_u24 v14, {step*512}, v16
v_add_u32 v14, {region + wg0*512 + wave*32 + idx*4}, v14
v_mul_u32_u24 v15, {4*512}, v13
v_add_u32 v15, {WS_ST[0]}, v15
buffer_load_dword v14, v14, {ws}, 0 offen sc1
buffer_load_dword v15, v15, {ws}, 0 offen sc1
s_waitcnt vmcnt(0)
""" + dpp(op, 14) + dpp('v_min_u32', 15) + f"""
s_nop 1
v_readlane_b32 s71, v14, 63
v_readlane_b32 s72, v15, 63
s_nop 3
s_sub_u32 s71, s71, s72
s_mul_i32 s71, s71, 10
s_add_u32 s71, s71, 3000
s_min_u32 s71, s71, 40000
L_spin:
s_memrealtime s[74:75]
s_waitcnt lgkmcnt(0)
s_sub_u32 s73, s74, s72
s_cmp_lt_u32 s73, s71
s_cbranch_scc1 L_spin
L_diag_end:
"""
    L = L[:i+1] + extra.split('\n') + L[i+1:]
    open(out, 'w').write('\n'.join(L))
if __name__ == '__main__':
    diag('d1.s', {}, WS_ST[0], 0, 4, 0, 2, 'max')
    diag('d2.s', {}, WS_ST[0], 0, 4, 0, 4, 'max')
    diag('d3.s', {}, WS_ST[0], 256, 1, 0, 2, 'max', nlanes=56)
    diag('d4.s', {}, WS_ST[0], 256, 1, 0, 7, 'max', nlanes=56)
    diag('d5.s', {}, WS_ST[1], 0, 1, 0, 0, 'min', nlanes=1)
    diag('d6.s', {}, WS_ST[1], 0, 1, 0, 7, 'min', nlanes=1)
```
